```python
import torch

def _softmax(x, axis=-1):
    return torch.softmax(x, dim=axis)
def _gelu(x):
    return torch.nn.functional.gelu(x, approximate="tanh")
def _silu(x):
    return torch.nn.functional.silu(x)
def _sigmoid(x):
    return torch.sigmoid(x)
def _layernorm(x, axis=-1, eps=1e-5):
    m = x.mean(dim=axis, keepdim=True)
    v = x.var(dim=axis, keepdim=True, unbiased=False)
    return (x - m) / torch.sqrt(v + eps)
def _scatter_add(tgt, idx, src, axis=0):
    return tgt.clone().index_add_(axis, idx, src)
def _segment_sum(src, seg, n):
    out = torch.zeros((n,) + src.shape[1:], dtype=src.dtype)
    return out.index_add_(0, seg, src)
def _pad(x, pw):
    flat = tuple(v for pair in reversed(pw) for v in pair)
    return torch.nn.functional.pad(x, flat)

kernel_name = 'concat_heads__mha_block_cached__gqa_block_cached__near_ridge'

def setup_inputs():

    _w = (lambda a: (lambda t: t.to(torch.bfloat16) if t.is_floating_point() else t)(torch.as_tensor(a)))
    def _A_setup():
        B, Sq, D = 16, 160, 448
        H, Sk, Dh = 16, 512, 256
        return {
            "x": _w((lambda *s: torch.randn(*s, dtype=torch.bfloat16) * 0.8)(B, Sq, D)),
            "k_cache": _w((lambda *s: torch.randn(*s, dtype=torch.bfloat16) * 0.8)(B, H, Sk, Dh)),
            "v_cache": _w((lambda *s: torch.randn(*s, dtype=torch.bfloat16) * 0.05)(B, H, Sk, Dh)),
            "wq": _w((lambda *s: torch.randn(*s, dtype=torch.bfloat16) * 0.8)(D, H * Dh) * (D ** -0.5)),
            "wo": _w((lambda *s: torch.randn(*s, dtype=torch.bfloat16) * 0.05)(H * Dh, D) * ((H * Dh) ** -0.5)),
        }
    _A_in = _A_setup()

    def _B_setup():
        B, Sq, D = 16, 160, 448
        Hq, Hkv, Sk, Dh = 16, 16, 512, 256
        assert Hq % Hkv == 0, (Hq, Hkv)
        return {
            "x": _w((lambda *s: torch.randn(*s, dtype=torch.bfloat16) * 0.8)(B, Sq, D)),
            "k_cache": _w((lambda *s: torch.randn(*s, dtype=torch.bfloat16) * 0.8)(B, Hkv, Sk, Dh)),
            "v_cache": _w((lambda *s: torch.randn(*s, dtype=torch.bfloat16) * 0.05)(B, Hkv, Sk, Dh)),
            "wq": _w((lambda *s: torch.randn(*s, dtype=torch.bfloat16) * 0.8)(D, Hq * Dh) * (D ** -0.5)),
            "wo": _w((lambda *s: torch.randn(*s, dtype=torch.bfloat16) * 0.05)(Hq * Dh, D) * ((Hq * Dh) ** -0.5)),
        }
    _B_in = _B_setup()

    return {
        "A_x": _A_in["x"],
        "A_k_cache": _A_in["k_cache"],
        "A_v_cache": _A_in["v_cache"],
        "A_wq": _A_in["wq"],
        "A_wo": _A_in["wo"],
        "B_x": _B_in["x"],
        "B_k_cache": _B_in["k_cache"],
        "B_v_cache": _B_in["v_cache"],
        "B_wq": _B_in["wq"],
        "B_wo": _B_in["wo"],
    }

def reference(A_x, A_k_cache, A_v_cache, A_wq, A_wo, B_x, B_k_cache, B_v_cache, B_wq, B_wo):
    def _A_ref(x, k_cache, v_cache, wq, wo):
        B, Sq, D = x.shape
        H, Dh = 16, 256
        q = (lambda x, *d: x.permute(*d))((x @ wq).reshape(B, Sq, H, Dh), 0, 2, 1, 3)
        scores = torch.einsum("bhqd,bhkd->bhqk", q, k_cache) * (Dh ** -0.5)
        p = _softmax(scores, axis=-1)
        o = torch.einsum("bhqk,bhkd->bhqd", p, v_cache)
        return (lambda x, *d: x.permute(*d))(o, 0, 2, 1, 3).reshape(B, Sq, H * Dh) @ wo

    def _B_ref(x, k_cache, v_cache, wq, wo):
        B, Sq, D = x.shape
        Hq, Dh = 16, 256
        Hkv = k_cache.shape[1]
        rep = Hq // Hkv
        q = (lambda x, *d: x.permute(*d))((x @ wq).reshape(B, Sq, Hq, Dh), 0, 2, 1, 3)
        k = (lambda x, n, axis: torch.repeat_interleave(x, n, dim=axis))(k_cache, rep, axis=1)
        v = (lambda x, n, axis: torch.repeat_interleave(x, n, dim=axis))(v_cache, rep, axis=1)
        scores = torch.einsum("bhqd,bhkd->bhqk", q, k) * (Dh ** -0.5)
        p = _softmax(scores, axis=-1)
        o = torch.einsum("bhqk,bhkd->bhqd", p, v)
        return (lambda x, *d: x.permute(*d))(o, 0, 2, 1, 3).reshape(B, Sq, Hq * Dh) @ wo

    a = _A_ref(A_x, A_k_cache, A_v_cache, A_wq, A_wo)
    b = _B_ref(B_x, B_k_cache, B_v_cache, B_wq, B_wo)
    return torch.concatenate([a, b], axis=-1)
```

```python
NAME = "concat_heads__mha_block_cached__gqa_block_cached__near_ridge"
HEADER_COMMENT = open("cdna_kernels/%s.s.ref" % NAME).read().split("; Override launch geometry")[0]

class Asm:
    def __init__(self):
        self.lines = []
    def __call__(self, s):
        for l in s.strip("\n").split("\n"):
            self.lines.append("    " + l.strip() if not l.strip().endswith(":") else l.strip())
    def label(self, n):
        self.lines.append(n + ":")
    def text(self):
        return "\n".join(self.lines) + "\n"

def kernel_open(name):
    return ".globl %s\n.p2align 8\n.type %s,@function\n%s:\n" % (name, name, name)

def kd(name, vgpr, sgpr, accum):
    return (".amdhsa_kernel %s\n  .amdhsa_next_free_vgpr %d\n  .amdhsa_next_free_sgpr %d\n  .amdhsa_accum_offset %d\n"
            "  .amdhsa_group_segment_fixed_size 0\n  .amdhsa_kernarg_size 104\n  .amdhsa_user_sgpr_count 2\n"
            "  .amdhsa_user_sgpr_kernarg_segment_ptr 1\n  .amdhsa_system_sgpr_workgroup_id_x 1\n  .amdhsa_float_denorm_mode_32 3\n.end_amdhsa_kernel\n" % (name, vgpr, sgpr, accum))

def build(kernels):
    out = HEADER_COMMENT
    if len(kernels) == 1 and kernels[0]["name"] == NAME + "_kernel":
        k = kernels[0]
        out += "; @launch grid=(%d,1,1) block=(%d,1,1) lds=%d\n" % (k["grid"], k["block"], k["lds"])
    else:
        for k in kernels:
            out += "; @launch kernel=%s grid=(%d,1,1) block=(%d,1,1) lds=%d\n" % (k["name"], k["grid"], k["block"], k["lds"])
    out += '.amdgcn_target "amdgcn-amd-amdhsa--gfx950"\n.text\n'
    seen = []
    for k in kernels:
        if k["name"] in seen: continue
        seen.append(k["name"])
        out += kernel_open(k["name"]) + k["body"]
    out += '.section .rodata,"a"\n'
    seen = []
    for k in kernels:
        if k["name"] in seen: continue
        seen.append(k["name"])
        out += ".p2align 6\n" + kd(k["name"], k["vgpr"], k["sgpr"], k["accum"])
    return out
```

```python
import heapq

MEMLD = ('ldsr', 'ldsw', 'vld', 'vst', 'dma')
LGKM = ('ldsr', 'ldsw')
VM = ('vld', 'vst', 'dma')
SCALAR = ('salu', 'bar', 'br')

def R(s):
    if isinstance(s, (list, tuple)):
        out = []
        for x in s: out += R(x)
        return out
    if len(s) > 1 and s[0] in 'vas' and s[1] == '[':
        lo, hi = s[2:-1].split(':')
        return ['%s%d' % (s[0], i) for i in range(int(lo), int(hi) + 1)]
    return [s]

class Op:
    __slots__ = ('text', 'kind', 'rd', 'wr', 'srcc', 'idx', 'preds', 'succs', 'nb', 'due', 'alap', 'pos', 'gap',
                 'done', 'npred', 'mi', 'cnt', 'soft', 'swap', 'tag', 'mind', 'states')
    def __init__(self, text, kind, rd, wr, srcc=(), nb=None, due=None, soft=None, swap=False, tag=None, mind=None):
        self.text = text; self.kind = kind
        self.rd = R(rd); self.wr = R(wr); self.srcc = R(srcc)
        self.preds = []; self.succs = []
        self.mind = mind or {}; self.nb = nb; self.due = due; self.soft = soft; self.swap = swap; self.tag = tag
        self.pos = None; self.gap = None; self.done = False; self.mi = None; self.cnt = None

def isreg(r):
    return r[0] in 'va' and r[1:].isdigit()

class Prog:
    def __init__(self, lat_lds=7, lat_vm=40):
        self.ops = []
        self.lastw = {}; self.readers = {}
        self.nm = 0
        self.lat_lds = lat_lds; self.lat_vm = lat_vm
    def add(self, text, kind, rd=(), wr=(), **kw):
        op = Op(text, kind, rd, wr, **kw)
        op.idx = len(self.ops)
        if kind == 'mfma':
            op.mi = self.nm; self.nm += 1
        deps = {}
        def dep(p, dist, wait):
            if p is op: return
            d = deps.get(p.idx)
            if d is None: deps[p.idx] = [p, dist, wait]
            else:
                d[1] = max(d[1], dist); d[2] = d[2] or wait
        isv = kind in ('valu', 'trans')
        for r in op.rd + op.srcc:
            p = self.lastw.get(r)
            if p is None: continue
            dist = 0; wait = p.kind in MEMLD
            pv = p.kind in ('valu', 'trans')
            if isreg(r):
                if p.kind == 'mfma':
                    if kind == 'mfma' and r in op.srcc and r not in op.rd:
                        dist = 0 if op.srcc == p.wr else 6
                    else: dist = 8
                elif pv:
                    if kind == 'mfma': dist = 2
                    elif op.swap: dist = 2
                    elif p.kind == 'trans' and not p.swap: dist = 1
                    elif op.text.startswith('v_readfirstlane') or op.text.startswith('v_readlane'): dist = 1
            elif r == 'm0':
                dist = 1
            elif (r[0] == 's' and r[1:].isdigit()) or r == 'vcc':
                if pv:
                    dist = 5 if kind in VM else (2 if isv else 1)
            dist = max(dist, op.mind.get(r, 0))
            dep(p, dist, wait)
        for r in op.wr:
            p = self.lastw.get(r)
            if p is not None:
                dist = 0; wait = p.kind in MEMLD and isreg(r)
                if isreg(r) and p.kind == 'mfma' and kind != 'mfma': dist = 8
                dep(p, dist, wait)
            for q in self.readers.get(r, ()):
                dist = 0
                if isreg(r):
                    if q.kind == 'mfma' and r in q.srcc and kind != 'mfma': dist = 3
                    if q.kind == 'vst': dist = 2
                dep(q, dist, False)
        for r in op.wr:
            self.lastw[r] = op; self.readers[r] = []
        for r in op.rd + op.srcc:
            if r not in op.wr: self.readers.setdefault(r, []).append(op)
        op.preds = list(deps.values())
        for p, dist, wait in op.preds: p.succs.append((op, dist, wait))
        self.ops.append(op)
        return op

    def schedule(self, verbose=True):
        ops = self.ops
        INF = self.nm + 1000.0
        for op in reversed(ops):
            if op.kind == 'mfma':
                op.alap = float(op.mi); continue
            a = INF
            for s, dist, wait in op.succs:
                if wait: lat = self.lat_lds if op.kind in LGKM else self.lat_vm
                else: lat = max(0.4, dist / 2.5) + (0.6 if s.kind == 'mfma' else 0)
                a = min(a, s.alap - lat)
            if op.due is not None: a = op.due if op.kind in VM else min(a, op.due)
            op.alap = a
        out = []
        st = dict(n=0, lg=0, lgdone=0, vm=0, vmdone=0, gap=-1)
        for op in ops: op.npred = len(op.preds)
        ready = []
        def release(op):
            for s, dist, wait in op.succs:
                s.npred -= 1
                if s.npred == 0 and s.kind != 'mfma': ready.append(s)
        for op in ops:
            if op.npred == 0 and op.kind != 'mfma': ready.append(op)
        def emit_raw(text, kind, states=1):
            out.append((text, kind)); st['n'] += states
        def need_wait(oplist):
            lg = None; vm = None
            for op in oplist:
                for p, dist, wait in op.preds:
                    if not wait or not p.done: continue
                    if p.kind in LGKM:
                        if p.cnt > st['lgdone']: lg = max(lg or 0, p.cnt)
                    else:
                        if p.cnt > st['vmdone']: vm = max(vm or 0, p.cnt)
            return lg, vm
        def emit_wait(lg, vm):
            parts = []
            if vm is not None:
                n = min(63, st['vm'] - vm); parts.append('vmcnt(%d)' % n); st['vmdone'] = st['vm'] - n
            if lg is not None:
                n = min(15, st['lg'] - lg); parts.append('lgkmcnt(%d)' % n); st['lgdone'] = st['lg'] - n
            if parts: emit_raw('s_waitcnt ' + ' '.join(parts), 'wait')
        def dist_short(op, extra=0):
            sh = 0
            for p, dist, wait in op.preds:
                if dist: sh = max(sh, dist - (st['n'] + extra - p.pos - 1))
            return sh
        def emit(op):
            lg, vm = need_wait([op])
            emit_wait(lg, vm)
            sh = dist_short(op)
            if sh > 0: emit_raw('s_nop %d' % (sh - 1), 'nop', sh)
            op.pos = st['n']; op.gap = st['gap']; op.done = True
            if op.kind in LGKM: st['lg'] += 1; op.cnt = st['lg']
            if op.kind in VM: st['vm'] += 1; op.cnt = st['vm']
            emit_raw(op.text, op.kind)
            if op in ready: ready.remove(op)
            release(op)
        def force(op):
            todo = []; seen = set()
            def walk(o):
                for p, dist, wait in o.preds:
                    if not p.done and p.idx not in seen:
                        assert p.kind != 'mfma', ('mfma order violated', o.text, p.text)
                        seen.add(p.idx); todo.append(p); walk(p)
            walk(op)
            todo.sort(key=lambda o: o.idx)
            while todo:
                pick = None
                for o in todo:
                    if o.npred == 0 and dist_short(o) <= 0 and need_wait([o]) == (None, None): pick = o; break
                if pick is None:
                    for o in todo:
                        if o.npred == 0 and dist_short(o) <= 0: pick = o; break
                if pick is None:
                    for o in todo:
                        if o.npred == 0: pick = o; break
                emit(pick); todo.remove(pick)
            return len(seen)
        def ok(op, g, extra):
            if op.nb is not None and g < op.nb: return False
            if dist_short(op, extra) > 0: return False
            for p, dist, wait in op.preds:
                if wait:
                    done = p.cnt <= (st['lgdone'] if p.kind in LGKM else st['vmdone'])
                    if not done:
                        lat = op.soft if op.soft is not None else (self.lat_lds if p.kind in LGKM else self.lat_vm)
                        if g - p.gap < lat and op.alap > g + 1: return False
            if op.kind in LGKM and st['lg'] - st['lgdone'] >= 15: return False
            return True
        mf = [o for o in ops if o.kind == 'mfma']
        stats = dict(forced=0, forced_gaps=[])
        for i, m in enumerate(mf):
            nf = force(m)
            if nf and i > 0: stats['forced'] += nf; stats['forced_gaps'].append((i, nf))
            emit(m)
            st['gap'] = i
            nxt = mf[i + 1] if i + 1 < len(mf) else None
            if nxt is None: break
            cand = sorted((o for o in ready if ok(o, i, 0)), key=lambda o: (o.alap, o.idx))
            vec = [o for o in cand if o.kind not in SCALAR]
            sca = [o for o in cand if o.kind in SCALAR]
            chosen = []
            slots = 2
            bar = next((o for o in sca if o.kind == 'bar'), None)
            if bar is not None and (not vec or bar.alap <= vec[0].alap or vec[0].kind not in MEMLD):
                lg, vm = need_wait([bar, nxt]); w = lg is not None or vm is not None
                emit_wait(lg, vm); emit(bar)
                left = 1 if w else 2
                for o in vec:
                    if left and o.kind == 'valu' and need_wait([o]) == (None, None) and dist_short(o) <= 0:
                        emit(o); left -= 1
                continue
            sca = [o for o in sca if o.kind != 'bar']
            if vec:
                first = vec[0]
                if first.kind == 'valu':
                    mem = next((o for o in vec if o.kind == 'ldsr'), None)
                    if mem is not None: chosen = [mem, first]
                    else: chosen = [first]
                elif first.kind == 'ldsr':
                    chosen = [first]
                else:
                    chosen = [first]
                used = sum(2 if o.kind in ('trans', 'vld', 'vst', 'dma', 'ldsw') else 1 for o in chosen)
                if used < 2:
                    o2 = next((o for o in vec if o.kind == 'valu' and o not in chosen), None)
                    if o2 is not None: chosen.append(o2); used += 1
                slots = 2 - used
            lg, vm = need_wait(chosen + [nxt])
            if lg is not None or vm is not None:
                emit_wait(lg, vm)
                if sca and slots == 0 and chosen[-1].kind == 'valu' and sca[0].alap < chosen[-1].alap:
                    chosen.pop(); slots = 1
            elif sca:
                emit(sca.pop(0))
            for o in chosen:
                if dist_short(o) <= 0: emit(o)
                else: slots += 1
            while slots > 0:
                c2 = sorted((o for o in ready if o.kind in ('valu', 'salu', 'br') and ok(o, i, 0) and need_wait([o]) == (None, None)), key=lambda o: (o.alap, o.idx))
                if not c2: break
                emit(c2[0]); slots -= 1
        class Dummy: pass
        d = Dummy(); d.preds = [(o, 0, False) for o in ops if not o.done]; d.text = 'tail'
        force(d)
        self.out = out; self.stats = stats
        return out

def estimate(out):
    t = 0; costs = []; gap = []; started = False; mi = -1
    def cost(g):
        c = 4; prev = 'mfma'
        for k, txt in g:
            if k in ('wait', 'salu', 'bar', 'br'): c += 4
            elif k == 'nop': c += 4 * (int(txt.split()[1]) + 1)
            else:
                c = max(c, 8)
                if k in ('ldsr', 'ldsw', 'vld', 'vst', 'dma'):
                    if prev in ('valu', 'trans'): c += 8
                    elif c > 8 and prev in ('wait','salu','bar','br'): c += 8
                    elif prev in ('ldsr',): c += 4 if k == 'ldsr' else 0
                c += {'valu': 4, 'trans': 8, 'ldsr': 4, 'ldsw': 20, 'vld': 8, 'vst': 8, 'dma': 8}[k]
            prev = k
        return max(16, c)
    for txt, k in out:
        if k == 'mfma':
            if started:
                c = cost(gap); costs.append((mi, c)); t += c
            started = True; mi += 1; gap = []
        else: gap.append((k, txt))
    return t, costs
```

```python
import sys, argparse, struct
from asmlib import *
from sched import Prog, estimate

SLOT = 33792; PAIR = 2 * SLOT; RING = (0, 2, 1, 3)
EX = 4 * SLOT; EXW = 7168
LDS_BYTES = 163840
SCALE = struct.unpack('<I', struct.pack('<f', 1.4426950408889634 / 16.0))[0]

def q(f, n): return '%s[%d:%d]' % (f, 4 * n, 4 * n + 3)
def VQ(n): return q('v', n)
def AQ(n): return q('a', n)
def reg(quad, i):
    f = quad[0]; lo = int(quad[2:-1].split(':')[0]); return '%s%d' % (f, lo + i)
def half(quad, h):
    f = quad[0]; lo = int(quad[2:-1].split(':')[0]) + 2 * h; return '%s[%d:%d]' % (f, lo, lo + 1)

aK = [['v0', 'v1'], ['v2', 'v3']]; aV = [['v4', 'v5'], ['v6', 'v7']]; aW = [['v8', 'v9'], ['v10', 'v11']]
vLIN, vWROW, vX, vTOUCH, aEXw, aEXr = 'v12', 'v13', 'v14', 'v15', 'v16', 'v17'
vL = {'a': 'v18', 'b': 'v19', 's': 'v20'}
vT = ['v21', 'v22', 'v23']
NEGM = {'a': VQ(6), 'b': VQ(7), 's': VQ(8)}
SQ = [VQ(9 + i) for i in range(5)]
PQ = [VQ(14 + i) for i in range(10)]
BIG = [VQ(24 + i) for i in range(40)]
FR = [AQ(i) for i in range(10)]
PX = [AQ(10), AQ(11)]
OPART0 = [AQ(12 + i) for i in range(4)]
QPART1 = [AQ(16 + i) for i in range(4)]
ABIG = [AQ(20 + i) for i in range(42)]
aTOUCH = 'a252'
sX, sK, sV, sWQ, sWO, sWS = 's[8:11]', 's[12:15]', 's[16:19]', 's[20:23]', 's[24:27]', 's[28:31]'
sW, sPAR, sW8448, sW1056 = 's32', 's33', 's34', 's35'
sXA, sXB, sXS = 's36', 's37', 's38'
sSOFF = ['s40', 's41']; sSCALE, sMODE, sLO, sHI = 's42', 's43', 's44', 's45'
sBAD = 's[46:47]'; sCMP = 's[48:49]'; sTMP = 's50'; sST = 's51'; sTCH = 's52'; sHK = 's53'
sPC = 's[54:55]'
STAMP0 = 60

class Gen:
    def __init__(self, o):
        self.o = o
        self.p = Prog(lat_lds=o.lat_lds, lat_vm=o.lat_vm)
        self.pair = {}
        self.frl = FR; self.fri = 0
        self.si = 0; self.soi = 0; self.exi = 0
        self.bar_ex = {}
        self.after_bar = {}
        self.tiles = []
        self.nstamp = 0
    def valu(self, t, rd, wr, **k): return self.p.add(t, 'valu', rd, wr, **k)
    def salu(self, t, rd, wr, **k): return self.p.add(t, 'salu', rd, wr, **k)
    def mfma(self, d, a, b, c, extra=()):
        self.p.add('v_mfma_f32_16x16x32_bf16 %s, %s, %s, %s' % (d, a, b, c), 'mfma', [a, b] + list(extra), [d], srcc=([] if c == '0' else [c]))
    def frag(self):
        f = self.frl[self.fri % len(self.frl)]; self.fri += 1; return f
    def setfr(self, l):
        self.frl = l; self.fri = 0
    def base(self, r, n):
        s = RING[n % 4]; pr = s >> 1
        if self.pair.get(r, 0) != pr:
            self.valu(('v_add_u32 %s, %d, %s' if pr else 'v_subrev_u32 %s, %d, %s') % (r, PAIR, r), [r], [r])
            self.pair[r] = pr
        return (s & 1) * SLOT
    def stamp(self):
        if not self.o.stamps: return
        k = STAMP0 + 4 * self.nstamp; self.nstamp += 1
        self.salu('s_memrealtime s[%d:%d]\n    s_memtime s[%d:%d]' % (k, k + 1, k + 2, k + 3), [], ['STAMP'], nb=self.p.nm, due=self.p.nm)
    def dma(self, n, tok, first_gap):
        kind, arg = self.tiles[n]
        slot = RING[n % 4] * SLOT
        o = self.o
        cnt = 7 if kind == 'wq' else 8
        span = o.dma_span
        for j in range(cnt):
            due = first_gap + o.dma_lead + j * span / cnt
            if kind in ('k', 'v'):
                h, i = arg
                if j % 4 == 0:
                    so = sSOFF[self.soi & 1]; self.soi += 1
                    self.salu('s_mov_b32 %s, %d' % (so, h * 262144 + i * 32768 + (j >> 2) * 4096), [], [so])
                self.salu('s_add_u32 m0, %s, %d' % (sW8448, slot + 32 * j + 4096 * (j >> 2)), [sW8448], ['m0'])
                t = 'buffer_load_dwordx4 %s, %s, %s offen offset:%d%s lds' % (vLIN, sK if kind == 'k' else sV, so, (j & 3) * 1024, o.kvflag)
                rd = [vLIN]
            else:
                so = sSOFF[self.soi & 1]; self.soi += 1
                if kind == 'wq':
                    h, m, hf = arg
                    off = (224 * hf + 32 * j) * 8192 + h * 512 + m * 128; srd = sWQ
                else:
                    h, m = arg
                    off = (h * 256 + 32 * j) * 896 + m * 128; srd = sWO
                self.salu('s_mov_b32 %s, %d' % (so, off), [], [so])
                self.salu('s_add_u32 m0, %s, %d' % (sW1056, slot + 4224 * j), [sW1056], ['m0'])
                t = 'buffer_load_dwordx4 %s, %s, %s offen%s lds' % (vWROW, srd, so, o.wflag)
                rd = [vWROW]
            self.p.add(t, 'dma', rd + [so, 'm0', tok], ['D%d_%d' % (n, j)], due=due, mind={tok: (6 if tok != 'PRE' else 0)})
    def touch(self, n, nb, tok=None):
        kind, (h, i) = self.tiles[n]
        self.salu('s_mov_b32 %s, %d' % (sTCH, h * 262144 + i * 32768), [], [sTCH])
        self.p.add('buffer_load_dword %s, %s, %s, %s offen%s' % (aTOUCH, vTOUCH, sK if kind == 'k' else sV, sTCH, self.o.kvflag), 'vld',
                   [vTOUCH, sTCH] + ([tok] if tok else []), [], nb=nb, due=nb)
    def bar(self, n):
        kind = self.tiles[n][0]
        cnt = 7 if kind == 'wq' else 8
        rd = ['D%d_%d' % (n, j) for j in range(cnt)] + self.bar_ex.pop(n, [])
        wr = ['T%d' % n, 'T%d' % (n - 1)] + (['PRE'] if n == 0 else [])
        self.p.add('s_barrier', 'bar', rd, wr, soft=3)
        g = self.p.nm
        if n + 3 < len(self.tiles):
            if self.tiles[n + 3][0] == 'wo' and self.tiles[n + 2][0] != 'wo': self.wo_rowpat()
            self.dma(n + 3, 'T%d' % n, g)
        for (tn, dg) in self.touch_plan.get(n, []): self.touch(tn, g + dg)
        for cb in self.after_bar.pop(n, []): cb(n)
    def exchange(self, src, dst, off, wbar, rbar):
        tok = 'EX%d' % self.exi; self.exi += 1
        self.p.add('ds_write_b128 %s, %s offset:%d' % (aEXw, src, off), 'ldsw', [aEXw, src], [tok])
        self.bar_ex.setdefault(wbar, []).append(tok)
        self.after_bar.setdefault(rbar, []).append(
            lambda n: self.p.add('ds_read_b128 %s, %s offset:%d' % (dst, aEXr, off), 'ldsr', [aEXr, 'T%d' % n], [dst]))
    def trread(self, n, r, imm):
        f = self.frag(); b = self.base(r, n)
        for jj in range(2):
            self.p.add('ds_read_b64_tr_b16 %s, %s offset:%d' % (half(f, jj), r, b + imm(jj)), 'ldsr', [r, 'T%d' % n], [half(f, jj)])
        return f
    def wo_rowpat(self):
        t0, t1, t2 = vT
        v = self.valu
        v('v_mbcnt_lo_u32_b32 %s, -1, 0' % t0, [], [t0]); v('v_mbcnt_hi_u32_b32 %s, -1, %s' % (t0, t0), [t0], [t0])
        v('v_bfe_u32 %s, %s, 4, 1' % (t1, t0), [t0], [t1]); v('v_lshlrev_b32 %s, 4, %s' % (t1, t1), [t1], [t1])
        v('v_bfe_u32 %s, %s, 5, 1' % (t2, t0), [t0], [t2]); v('v_lshl_add_u32 %s, %s, 3, %s' % (t1, t2, t1), [t2, t1], [t1])
        v('v_bfe_u32 %s, %s, 3, 1' % (t2, t0), [t0], [t2]); v('v_add_u32 %s, %s, %s' % (t1, t1, t2), [t1, t2], [t1])
        v('v_lshl_add_u32 %s, %s, 1, %s' % (t1, sW, t1), [sW, t1], [t1])
        v('v_mul_u32_u24 %s, 896, %s' % (t1, t1), [t1], [t1])
        v('v_and_b32 %s, 7, %s' % (t0, t0), [t0], [t0])
        v('v_lshl_add_u32 %s, %s, 4, %s' % (vWROW, t0, t1), [t0, t1], [vWROW])
        self.salu('s_mul_i32 %s, %s, 4224' % (sTMP, sPAR), [sPAR], [sTMP])
        for c in range(2):
            v('v_add_u32 %s, 4224, %s' % (aW[1][c], aW[0][c]), [aW[0][c]], [aW[1][c]])
            v('v_subrev_u32 %s, %s, %s' % (aW[1][c], sTMP, aW[1][c]), [sTMP, aW[1][c]], [aW[1][c]])
            v('v_add_u32 %s, %s, %s' % (aW[0][c], sTMP, aW[0][c]), [sTMP, aW[0][c]], [aW[0][c]])
            self.pair[aW[1][c]] = self.pair.get(aW[0][c], 0)
    def xload(self, X, kss, tok=None, nb=None, step=0):
        k = 0
        for ks in kss:
            for qt, so in (('s', sXS), ('a', sXA), ('b', sXB)):
                d = X[qt][ks]
                pos = None if nb is None else nb + k * step
                self.p.add('buffer_load_dwordx4 %s, %s, %s, %s offen offset:%d%s' % (d, vX, sX, so, 64 * ks, self.o.xflag), 'vld',
                           [vX, so] + ([tok] if tok else []), [d], nb=pos, due=pos)
                k += 1
    def qphase(self, h, n0, X, Q):
        self.setfr(FR + SQ)
        acc = {}
        order = [(0, 's'), (0, 'a'), (0, 'b'), (1, 's'), (1, 'a'), (1, 'b'), (2, 'a'), (2, 'b'), (3, 'a'), (3, 'b')]
        for k, key in enumerate(order): acc[key] = PQ[k]
        for m in range(4):
            for hf in range(2):
                n = n0 + 2 * m + hf
                self.bar(n)
                for dt in range(4):
                    fr = [self.trread(n, aW[0][dt >> 1], lambda jj, ks=ks: ks * 4224 + jj * 256 + 32 * (dt & 1)) for ks in range(7)]
                    for qt in (('s', 'a', 'b') if dt < 2 else ('a', 'b')):
                        A = acc[(dt, qt)]
                        for ks in range(7):
                            self.mfma(A, fr[ks], X[qt][7 * hf + ks], '0' if (hf == 0 and ks == 0) else A, fr if self.p.nm == 0 else ())
                        if hf == 1:
                            for i in range(4): self.valu('v_mul_f32 %s, %s, %s' % (reg(A, i), sSCALE, reg(A, i)), [sSCALE, reg(A, i)], [reg(A, i)])
                            t = 2 * m + (dt >> 1); dst = Q[qt][t]
                            D = dst if dst[0] == 'v' else acc[(dt & 2, qt)]
                            for i in range(2):
                                self.valu('v_cvt_pk_bf16_f32 %s, %s, %s' % (reg(D, 2 * (dt & 1) + i), reg(A, 2 * i), reg(A, 2 * i + 1)),
                                          [reg(A, 2 * i), reg(A, 2 * i + 1)], [reg(D, 2 * (dt & 1) + i)])
                            if dt & 1:
                                for sw in ('32', '16'):
                                    for i in range(2):
                                        x, y = reg(D, i), reg(D, 2 + i)
                                        self.p.add('v_permlane%s_swap_b32 %s, %s' % (sw, x, y), 'trans', [x, y], [x, y], swap=True)
                                if qt == 's':
                                    self.exchange(D, Q['s'][t + 1], (self.exq & 1) * 1024, n + 1, n + 1); self.exq += 1
                                if dst[0] == 'a':
                                    for i in range(4): self.valu('v_accvgpr_write_b32 %s, %s' % (reg(dst, i), reg(D, i)), [reg(D, i)], [reg(dst, i)])
    def qk(self, h, i, n, Q, nread):
        buf = i & 1
        P = self.P[buf]
        for ks in range(2):
            for jj in range(2):
                fr = []
                for t in range(8):
                    f = self.frag(); r = aK[ks][t & 1]; b = self.base(r, n)
                    self.p.add('ds_read_b128 %s, %s offset:%d' % (f, r, b + jj * 512 + 128 * (t >> 1)), 'ldsr', [r, 'T%d' % n], [f])
                    fr.append(f)
                for qt in (('s', 'a', 'b') if ks == 0 else ('a', 'b')):
                    S = SQ[self.si % len(SQ)]; self.si += 1
                    for t in range(8): self.mfma(S, fr[t], Q[qt][t], NEGM[qt] if t == 0 else S)
                    for e in range(4): self.p.add('v_exp_f32 %s, %s' % (reg(S, e), reg(S, e)), 'trans', [reg(S, e)], [reg(S, e)])
                    D = P[qt][ks]
                    for e in range(2):
                        self.valu('v_cvt_pk_bf16_f32 %s, %s, %s' % (reg(D, 2 * jj + e), reg(S, 2 * e), reg(S, 2 * e + 1)),
                                  [reg(S, 2 * e), reg(S, 2 * e + 1)], [reg(D, 2 * jj + e)])
                    for e in range(4): self.valu('v_add_f32 %s, %s, %s' % (vL[qt], vL[qt], reg(S, e)), [vL[qt], reg(S, e)], [vL[qt]])
                    if qt == 's' and jj == 1:
                        self.exchange(D, P['s'][1], (self.exq & 1) * 1024, n + 1, nread); self.exq += 1
    def xreduce(self, r, op):
        t = vT[0]
        for sw in ('32', '16'):
            self.valu('v_mov_b32 %s, %s' % (t, r), [r], [t])
            self.p.add('v_permlane%s_swap_b32 %s, %s' % (sw, r, t), 'trans', [r, t], [r, t], swap=True)
            self.valu('%s %s, %s, %s' % (op, r, r, t), [r, t], [r])
    def lfinish(self, h, n):
        for qt in 'sab': self.xreduce(vL[qt], 'v_add_f32')
        tok = 'EX%d' % self.exi; self.exi += 1
        self.p.add('ds_write_b32 %s, %s offset:%d' % (aEXw, vL['s'], 6144), 'ldsw', [aEXw, vL['s']], [tok])
        self.bar_ex.setdefault(n + 2, []).append(tok)
        def fin(nn):
            t = vT[1]
            self.p.add('ds_read_b32 %s, %s offset:%d' % (t, aEXr, 6144), 'ldsr', [aEXr, 'T%d' % nn], [t])
            self.valu('v_add_f32 %s, %s, %s' % (vL['s'], vL['s'], t), [vL['s'], t], [vL['s']])
            ls = [vL[x] for x in 'abs']
            self.valu('v_min3_f32 %s, %s, %s, %s' % (t, *ls), ls, [t])
            self.valu('v_cmp_gt_f32 %s, %s, %s' % (sCMP, sLO, t), [sLO, t], [sCMP])
            self.salu('s_or_b64 %s, %s, %s' % (sBAD, sBAD, sCMP), [sBAD, sCMP], [sBAD])
            self.valu('v_max3_f32 %s, %s, %s, %s' % (t, *ls), ls, [t])
            self.valu('v_cmp_lt_f32 %s, %s, %s' % (sCMP, sHI, t), [sHI, t], [sCMP])
            self.salu('s_or_b64 %s, %s, %s' % (sBAD, sBAD, sCMP), [sBAD, sCMP], [sBAD])
            for x in 'abs': self.p.add('v_rcp_f32 %s, %s' % (vL[x], vL[x]), 'trans', [vL[x]], [vL[x]])
            if h == 1:
                self.salu('s_or_b32 %s, s46, s47' % sTMP, [sBAD], [sTMP])
                self.salu('s_andn2_b32 %s, %s, %s' % (sTMP, sTMP, sMODE), [sTMP, sMODE], [sTMP])
                self.valu('v_mov_b32 %s, %s' % (t, sTMP), [sTMP], [t])
                tok2 = 'EX%d' % self.exi; self.exi += 1
                self.p.add('ds_write_b32 %s, %s offset:%d' % (aEXw, t, 6148), 'ldsw', [aEXw, t], [tok2])
                self.bar_ex.setdefault(nn + 1, []).append(tok2)
                def vote(n3):
                    t2 = vT[2]
                    self.valu('v_bfe_u32 %s, %s, 4, 2' % (t2, vLIN), [vLIN], [t2])
                    self.valu('v_mul_u32_u24 %s, %d, %s' % (t2, EXW, t2), [t2], [t2])
                    self.valu('v_add_u32 %s, %d, %s' % (t2, EX + 6148, t2), [t2], [t2])
                    self.p.add('ds_read_b32 %s, %s' % (t2, t2), 'ldsr', [t2, 'T%d' % n3], [t2])
                    self.valu('v_cmp_ne_u32 vcc, 0, %s' % t2, [t2], ['vcc'])
                    self.p.add('s_cmp_lg_u64 vcc, 0\n    s_cbranch_scc1 L_restart', 'br', ['vcc'], ['OKGO'], mind={'vcc': 5})
                self.after_bar.setdefault(nn + 1, []).append(vote)
        self.after_bar.setdefault(n + 2, []).append(fin)
    def pv(self, h, i, n, O, OB):
        P = self.P[i & 1]
        for dt in range(16):
            c = (dt >> 1) & 1
            f = [self.trread(n, aV[ks][c], lambda jj: jj * 512 + 128 * (dt >> 2) + 32 * (dt & 1)) for ks in range(2)]
            seq = [('a', 0), ('a', 1), ('b', 1), ('b', 0)] + ([('s', 0), ('s', 1)] if c == 0 else [])
            for k, (qt, ks) in enumerate(seq):
                A = O[qt][dt]
                self.mfma(A, f[ks], P[qt][ks], '0' if (i == 0 and k % 2 == 0) else A)
            if i == 7 and (dt & 1):
                for qt in (('s', 'a', 'b') if c == 0 else ('a', 'b')):
                    D = OB[qt][dt >> 1]
                    for jj in range(2):
                        A = O[qt][dt - 1 + jj]
                        if A[0] == 'a':
                            T = D if jj == 0 else list(NEGM.values())[self.tq % 3]
                            if jj: self.tq += 1
                            for e in range(4): self.valu('v_accvgpr_read_b32 %s, %s' % (reg(T, e), reg(A, e)), [reg(A, e)], [reg(T, e)])
                            A = T
                        for e in range(4): self.valu('v_mul_f32 %s, %s, %s' % (reg(A, e), vL[qt], reg(A, e)), [vL[qt], reg(A, e)], [reg(A, e)])
                        for e in range(2):
                            self.valu('v_cvt_pk_bf16_f32 %s, %s, %s' % (reg(D, 2 * jj + e), reg(A, 2 * e), reg(A, 2 * e + 1)),
                                      [reg(A, 2 * e), reg(A, 2 * e + 1)], [reg(D, 2 * jj + e)])
                    if qt == 's':
                        self.exchange(D, OB['s'][(dt >> 1) + 1], 2048 + (dt >> 2) * 1024, n + 2, n + 2)
    def aphase(self, h, n0, Q, O, OB, hooktmp, pre_next):
        self.bar(n0)
        self.setfr(FR)
        allq = [x for qt in 'sab' for x in Q[qt]]
        self.p.add('s_cmp_lg_u32 %s, 0\n    s_cbranch_scc1 L_hook%d\nL_ret%d:' % (sMODE, h, h), 'br', allq + [sMODE],
                   list(NEGM.values()) + list(vL.values()) + vT + SQ[:3] + hooktmp + [sTMP, sHK])
        for qt in 'sab': self.valu('v_mov_b32 %s, 0' % vL[qt], [], [vL[qt]])
        self.stamp()
        n = n0
        self.qk(h, 0, n, Q, n + 1); n += 1
        for i in range(1, 8):
            self.bar(n); self.qk(h, i, n, Q, n + 2 if i < 7 else n + 1)
            if i == 7: self.lfinish(h, n)
            if pre_next: pre_next(i)
            n += 1
            self.bar(n); self.pv(h, i - 1, n, O, OB); n += 1
        self.bar(n); self.pv(h, 7, n, O, OB)
        self.stamp()
    def ophase(self, n0, OB):
        self.setfr(FR + SQ + PX)
        acc = {}
        order = [(0, 'a'), (0, 'b'), (0, 's'), (1, 'a'), (1, 'b'), (1, 's'), (2, 'a'), (2, 'b'), (3, 'a'), (3, 'b')]
        for k, key in enumerate(order): acc[key] = PQ[k]
        n = n0
        for m in range(7):
            for h in range(2):
                self.bar(n)
                for nt in range(4):
                    fr = [self.trread(n, aW[u & 1][nt >> 1], lambda jj, u=u: (u >> 1) * 8448 + jj * 256 + 32 * (nt & 1)) for u in range(8)]
                    for qt in (('a', 'b', 's') if nt < 2 else ('a', 'b')):
                        A = acc[(nt, qt)]
                        for u in range(8): self.mfma(A, fr[u], OB[h][qt][u], '0' if (h == 0 and u == 0) else A)
                        if h == 1:
                            D = acc[(nt & 2, qt)]
                            for e in range(2):
                                self.valu('v_cvt_pk_bf16_f32 %s, %s, %s' % (reg(D, 2 * (nt & 1) + e), reg(A, 2 * e), reg(A, 2 * e + 1)),
                                          [reg(A, 2 * e), reg(A, 2 * e + 1)], [reg(D, 2 * (nt & 1) + e)])
                            if nt & 1:
                                c5 = {'a': nt >> 1, 'b': 2 + (nt >> 1), 's': 4}[qt]
                                self.salu('s_mov_b32 %s, %d' % (sST, m * 32768 + c5 * 1024), [], [sST])
                                self.p.add('buffer_store_dwordx4 %s, %s, %s, %s offen%s' % (D, vLIN, sWS, sST, self.o.stflag), 'vst',
                                           [D, vLIN, sST, 'OKGO'], [], due=self.p.nm + 12)
                n += 1
    def build(self):
        o = self.o
        T = self.tiles
        def attn_tiles(h):
            l = [('k', (h, 0))]
            for i in range(1, 8): l += [('k', (h, i)), ('v', (h, i - 1))]
            return l + [('v', (h, 7))]
        for h in range(2):
            T += [('wq', (h, m, hf)) for m in range(4) for hf in range(2)]
            T += attn_tiles(h)
        T += [('wo', (h, m)) for m in range(7) for h in range(2)]
        self.touch_plan = {}
        for h in range(2):
            for (at, tile) in o.touch:
                n = 24 * h + int(at)
                self.touch_plan.setdefault(n, []).append((24 * h + 8 + tile, int((at - int(at)) * 70) + 5))
        self.exq = 0; self.tq = 0
        self.P = [{'a': [PQ[5 * b], PQ[5 * b + 1]], 'b': [PQ[5 * b + 2], PQ[5 * b + 3]], 's': [PQ[5 * b + 4], PX[b]]} for b in range(2)]
        def xmap(lst): return {qt: [lst[3 * ks + k] for ks in range(14)] for k, qt in enumerate('sab')}
        X0 = xmap(BIG + ABIG[:2]); X1 = xmap(ABIG)
        Q0 = {qt: ABIG[18 + 8 * k: 26 + 8 * k] for k, qt in enumerate('sab')}
        def omap(lst):
            O = {'a': [None] * 16, 'b': [None] * 16, 's': [None] * 16}; k = 0
            for u in range(8):
                for qt in (('s', 'a', 'b') if u % 2 == 0 else ('a', 'b')):
                    O[qt][2 * u] = lst[k]; O[qt][2 * u + 1] = lst[k + 1]; k += 2
            return O
        O0 = omap(BIG); O1 = omap(ABIG[:40])
        OB0 = {qt: [O0[qt][2 * u] for u in range(8)] for qt in 'sab'}
        Q1 = {qt: [O0[qt][2 * u + 1] for u in range(8)] for qt in 'sab'}
        for u in range(1, 8, 2): OB0['s'][u] = OPART0[u >> 1]; Q1['s'][u] = QPART1[u >> 1]
        OB1 = Q1
        self.maps = dict(Q0=Q0, Q1=Q1, X0=X0, X1=X1)
        for j in range(o.codetouch):
            self.salu('s_add_u32 s54, s54, %d\n    s_addc_u32 s55, s55, 0' % (32768 if j else 0), [sPC], [sPC])
            self.p.add('global_load_dword %s, %s, %s' % (aTOUCH, vTOUCH, sPC), 'vld', [vTOUCH, sPC, 'PRE'], [])
        self.dma(0, 'PRE', 0); self.xload(X0, range(7), 'PRE')
        self.dma(1, 'PRE', 0); self.xload(X0, range(7, 14), 'PRE')
        self.dma(2, 'PRE', 0)
        self.qphase(0, 0, X0, Q0)
        def pre(i):
            if i == 6: self.xload(X1, range(6), nb=self.p.nm + 10, step=8)
            if i == 7: self.xload(X1, range(6, 14), nb=self.p.nm + 2, step=5)
        self.aphase(0, 8, Q0, O0, OB0, BIG[:8], pre)
        self.qphase(1, 24, X1, Q1)
        self.aphase(1, 32, Q1, O1, OB1, ABIG[:8], None)
        self.ophase(48, [OB0, OB1])
        assert not self.bar_ex and not self.after_bar, (self.bar_ex, self.after_bar.keys())
        return self.p.schedule()
    def hook(self, h):
        Q = self.maps['Q%d' % h]; F = BIG[:8] if h == 0 else ABIG[:8]
        a = Asm(); t0, t1, t2 = vT
        a.label('L_hook%d' % h)
        a('v_mbcnt_lo_u32_b32 %s, -1, 0\nv_mbcnt_hi_u32_b32 %s, -1, %s' % (t2, t2, t2))
        a('v_and_b32 %s, 15, %s\nv_lshlrev_b32 %s, 9, %s' % (t0, t2, t0, t0))
        a('v_and_b32 %s, 48, %s\nv_add_u32 %s, %s, %s' % (t2, t2, t0, t0, t2))
        a('s_lshl_b32 %s, %s, 6' % (sTMP, sPAR))
        a('v_add_u32 %s, %s, %s\nv_xor_b32 %s, 64, %s' % (t0, sTMP, t0, t1, t0))
        for qt in 'sab': a('v_mov_b32 %s, 0xff800000' % vL[qt])
        a('s_mov_b32 %s, %d' % (sHK, h * 262144))
        a.label('L_hookloop%d' % h)
        for t in range(8): a('buffer_load_dwordx4 %s, %s, %s, %s offen offset:%d' % (F[t], (t0, t1)[t & 1], sK, sHK, 128 * (t >> 1)))
        a('s_waitcnt vmcnt(0)')
        for k, qt in enumerate('sab'):
            for t in range(8): a('v_mfma_f32_16x16x32_bf16 %s, %s, %s, %s' % (SQ[k], F[t], Q[qt][t], '0' if t == 0 else SQ[k]))
        a('s_nop 7\ns_nop 1')
        for k, qt in enumerate('sab'):
            a('v_max3_f32 %s, %s, %s, %s' % (vL[qt], vL[qt], reg(SQ[k], 0), reg(SQ[k], 1)))
            a('v_max3_f32 %s, %s, %s, %s' % (vL[qt], vL[qt], reg(SQ[k], 2), reg(SQ[k], 3)))
        a('s_add_u32 %s, %s, 8192\ns_cmp_lt_u32 %s, %d\ns_cbranch_scc1 L_hookloop%d' % (sHK, sHK, sHK, (h + 1) * 262144, h))
        for qt in 'sab':
            for sw in ('32', '16'):
                a('v_mov_b32 %s, %s\ns_nop 1\nv_permlane%s_swap_b32 %s, %s\ns_nop 1\nv_max_f32 %s, %s, %s' % (t2, vL[qt], sw, vL[qt], t2, vL[qt], vL[qt], t2))
            for e in range(4): a('v_sub_f32 %s, 0, %s' % (reg(NEGM[qt], e), vL[qt]))
        a('s_nop 2\ns_branch L_ret%d' % h)
        return a.text()

def prologue(o):
    a = Asm()
    a("""
    s_cmp_ge_u32 s2, 256
    s_cbranch_scc1 L_end
    s_and_b32 s3, s2, 7
    s_lshr_b32 s4, s2, 3
    s_lshr_b32 s5, s3, 2
    s_mul_i32 s6, s5, 40
    s_add_u32 s6, s0, s6
    s_addc_u32 s7, s1, 0
    s_load_dwordx2 s[8:9], s[6:7], 0
    s_load_dwordx2 s[12:13], s[6:7], 8
    s_load_dwordx2 s[16:17], s[6:7], 16
    s_load_dwordx2 s[20:21], s[6:7], 24
    s_load_dwordx2 s[24:25], s[6:7], 32
    s_load_dwordx2 s[28:29], s[0:1], 96
    """)
    if o.stamps: a('s_memrealtime s[56:57]\ns_memtime s[58:59]')
    if o.map == 'B': a('s_and_b32 s7, s3, 3\ns_lshl_b32 s7, s7, 1\ns_and_b32 s39, s4, 1\ns_add_u32 s7, s7, s39\ns_lshr_b32 s6, s4, 1')
    if o.map == 'C': a('s_and_b32 s7, s3, 1\ns_lshl_b32 s7, s7, 2\ns_and_b32 s39, s4, 3\ns_add_u32 s7, s7, s39\ns_and_b32 s6, s3, 2\ns_lshl_b32 s6, s6, 2\ns_lshr_b32 s39, s4, 2\ns_add_u32 s6, s6, s39')
    if o.map == 'A': a('s_and_b32 s7, s4, 7\ns_and_b32 s6, s3, 3\ns_lshl_b32 s6, s6, 2\ns_lshr_b32 s39, s4, 3\ns_add_u32 s6, s6, s39')
    a("""
    v_lshrrev_b32 v21, 6, v0
    v_lshlrev_b32 v15, 7, v0
    v_readfirstlane_b32 s32, v21
    s_mov_b32 s43, 0
    s_mov_b32 s10, 143360
    s_mov_b32 s11, 0x20000
    s_mov_b32 s14, 524288
    s_mov_b32 s15, 0x20000
    s_mov_b32 s18, 524288
    s_mov_b32 s19, 0x20000
    s_mov_b32 s23, 0x20000
    s_mov_b32 s26, 458752
    s_mov_b32 s27, 0x20000
    s_mov_b32 s30, 229376
    s_mov_b32 s31, 0x20000
    s_and_b32 s33, s32, 1
    s_mul_i32 s34, s32, 8448
    s_mul_i32 s35, s32, 1056
    s_lshr_b32 s39, s32, 1
    s_mul_i32 s38, s39, 71680
    s_mul_i32 s36, s33, 28672
    s_add_u32 s36, s36, s38
    s_add_u32 s37, s36, 14336
    s_add_u32 s38, s38, 57344
    s_waitcnt lgkmcnt(0)
    s_mul_i32 s39, s6, 143360
    s_add_u32 s8, s8, s39
    s_addc_u32 s9, s9, 0
    s_lshl_b32 s39, s6, 3
    s_add_u32 s39, s39, s7
    s_lshl_b32 s50, s39, 19
    s_add_u32 s12, s12, s50
    s_addc_u32 s13, s13, 0
    s_add_u32 s16, s16, s50
    s_addc_u32 s17, s17, 0
    s_lshl_b32 s50, s7, 10
    s_add_u32 s20, s20, s50
    s_addc_u32 s21, s21, 0
    s_sub_u32 s22, 3670016, s50
    s_mul_i32 s50, s7, 458752
    s_add_u32 s24, s24, s50
    s_addc_u32 s25, s25, 0
    s_lshl_b32 s50, s5, 7
    s_add_u32 s39, s39, s50
    s_mul_i32 s50, s39, 229376
    s_add_u32 s28, s28, s50
    s_addc_u32 s29, s29, 0
    """)
    a('s_mov_b32 %s, 0x%x\ns_mov_b32 %s, 0x%x\ns_mov_b32 %s, 0x%x' % (sSCALE, SCALE, sLO, (127 - 30) << 23, sHI, (127 + 30) << 23))
    a.label('L_start')
    a("""
    s_getpc_b64 s[54:55]
    s_mov_b64 s[46:47], 0
    v_mbcnt_lo_u32_b32 v21, -1, 0
    v_mbcnt_hi_u32_b32 v21, -1, v21
    s_lshl_b32 s50, s32, 13
    v_lshlrev_b32 v22, 4, v21
    v_add_u32 v12, s50, v22
    v_bfe_u32 v13, v21, 5, 1
    v_lshlrev_b32 v13, 4, v13
    v_bfe_u32 v23, v21, 4, 1
    v_lshl_add_u32 v13, v23, 2, v13
    v_bfe_u32 v23, v21, 3, 1
    v_add_u32 v13, v13, v23
    s_lshr_b32 s39, s32, 1
    s_lshl_b32 s39, s39, 3
    s_lshl_b32 s50, s33, 1
    s_add_u32 s39, s39, s50
    v_add_u32 v13, s39, v13
    v_lshlrev_b32 v13, 13, v13
    v_and_b32 v23, 7, v21
    v_lshl_add_u32 v13, v23, 4, v13
    v_and_b32 v23, 15, v21
    v_mul_u32_u24 v14, 896, v23
    v_and_b32 v18, 48, v21
    v_add_u32 v14, v14, v18
    v_mul_u32_u24 v0, 1056, v23
    v_add_u32 v0, v0, v18
    v_lshrrev_b32 v23, 2, v21
    v_mul_u32_u24 v4, 1056, v23
    v_and_b32 v19, 3, v21
    v_lshl_add_u32 v4, v19, 3, v4
    s_mul_i32 s39, s33, 16960
    s_mul_i32 s50, s33, 16832
    s_add_u32 s50, s50, 64
    v_add_u32 v1, s50, v0
    v_add_u32 v5, s50, v4
    s_sub_u32 s50, 16960, s50
    v_add_u32 v2, s50, v0
    v_add_u32 v6, s50, v4
    s_sub_u32 s50, 16960, s39
    v_add_u32 v3, s50, v0
    v_add_u32 v7, s50, v4
    v_add_u32 v0, s39, v0
    v_add_u32 v4, s39, v4
    v_bfe_u32 v23, v21, 3, 2
    v_mul_u32_u24 v8, 1056, v23
    v_bfe_u32 v23, v21, 2, 1
    v_lshl_add_u32 v8, v23, 7, v8
    v_bfe_u32 v23, v21, 5, 1
    v_lshl_add_u32 v8, v23, 9, v8
    v_lshl_add_u32 v8, v19, 3, v8
    s_lshl_b32 s39, s33, 6
    s_sub_u32 s50, 64, s39
    v_add_u32 v9, s50, v8
    v_add_u32 v8, s39, v8
    """)
    a('s_mul_i32 s39, s32, %d\ns_add_u32 s39, s39, %d\nv_add_u32 v16, s39, v22' % (EXW, EX))
    a('s_xor_b32 s39, s32, 1\ns_mul_i32 s39, s39, %d\ns_add_u32 s39, s39, %d\nv_add_u32 v17, s39, v22' % (EXW, EX))
    for i in range(24, 36): a('v_mov_b32 v%d, 0' % i)
    return a.text()

def reducer(o):
    a = Asm()
    a("""
    s_cmp_ge_u32 s2, 1120
    s_cbranch_scc1 R_end
    s_load_dwordx2 s[8:9], s[0:1], 96
    s_load_dwordx2 s[12:13], s[0:1], 80
    v_lshrrev_b32 v1, 6, v0
    v_and_b32 v2, 63, v0
    v_readfirstlane_b32 s4, v1
    ; group = s2 / 35 ; rem = s2 % 35 = m*5 + c5 ; wave = source wave
    s_mul_hi_u32 s5, s2, 122713352
    s_mul_i32 s6, s5, 35
    s_sub_u32 s6, s2, s6
    s_mul_i32 s7, s6, 52
    s_lshr_b32 s7, s7, 8
    s_mul_i32 s16, s7, 5
    s_sub_u32 s16, s6, s16
    s_mov_b32 s10, 1835008
    s_mov_b32 s11, 0x20000
    s_mov_b32 s14, 4587520
    s_mov_b32 s15, 0x20000
    s_lshl_b32 s17, s7, 15
    s_lshl_b32 s18, s4, 13
    s_add_u32 s17, s17, s18
    s_lshl_b32 s18, s16, 10
    s_add_u32 s17, s17, s18
    v_lshlrev_b32 v3, 4, v2
    v_add_u32 v3, s17, v3
    s_mul_i32 s18, s5, 1835008
    s_waitcnt lgkmcnt(0)
    s_add_u32 s8, s8, s18
    s_addc_u32 s9, s9, 0
    s_mov_b32 s19, 0
    """)
    for j in range(8):
        a('buffer_load_dwordx4 v[%d:%d], v3, s[8:11], s19 offen%s' % (8 + 4 * j, 11 + 4 * j, o.rdflag))
        if j < 7: a('s_add_u32 s19, s19, 229376')
    a("""
    s_and_b32 s20, s4, 1
    s_lshr_b32 s21, s4, 1
    s_mul_i32 s21, s21, 5
    s_lshr_b32 s22, s16, 1
    s_lshl_b32 s23, s20, 1
    s_add_u32 s23, s23, s22
    s_cmp_eq_u32 s16, 4
    s_cselect_b32 s23, 4, s23
    s_add_u32 s21, s21, s23
    s_and_b32 s22, s5, 15
    s_mul_i32 s22, s22, 10
    s_add_u32 s21, s21, s22
    s_mul_i32 s21, s21, 28672
    s_and_b32 s22, s16, 1
    s_xor_b32 s22, s22, s20
    s_lshl_b32 s22, s22, 6
    s_add_u32 s21, s21, s22
    s_lshl_b32 s22, s7, 7
    s_add_u32 s21, s21, s22
    s_lshr_b32 s22, s5, 4
    s_mul_i32 s22, s22, 896
    s_add_u32 s21, s21, s22
    v_and_b32 v4, 15, v2
    v_mul_u32_u24 v4, 1792, v4
    v_and_b32 v5, 48, v2
    v_add_u32 v4, v4, v5
    """)
    for j in range(8):
        a('s_waitcnt vmcnt(%d)' % (7 - j))
        for e in range(4):
            src = 8 + 4 * j + e
            if j == 0:
                a('v_lshlrev_b32 v%d, 16, v%d\nv_and_b32 v%d, 0xffff0000, v%d' % (40 + 2 * e, src, 41 + 2 * e, src))
            else:
                a('v_lshlrev_b32 v6, 16, v%d\nv_and_b32 v7, 0xffff0000, v%d' % (src, src))
                a('v_add_f32 v%d, v%d, v6\nv_add_f32 v%d, v%d, v7' % (40 + 2 * e, 40 + 2 * e, 41 + 2 * e, 41 + 2 * e))
    for e in range(4): a('v_cvt_pk_bf16_f32 v%d, v%d, v%d' % (8 + e, 40 + 2 * e, 41 + 2 * e))
    a("""
    s_nop 1
    v_permlane32_swap_b32 v8, v10
    v_permlane32_swap_b32 v9, v11
    s_nop 1
    v_permlane16_swap_b32 v8, v10
    v_permlane16_swap_b32 v9, v11
    s_nop 1
    buffer_store_dwordx4 v[8:11], v4, s[12:15], s21 offen
    R_end:
    s_endpgm
    """)
    return a.text()

def main(argv):
    ap = argparse.ArgumentParser()
    ap.add_argument('-o', default='k.s')
    ap.add_argument('--map', default='B')
    ap.add_argument('--stamps', type=int, default=0)
    ap.add_argument('--lat_lds', type=float, default=7)
    ap.add_argument('--lat_vm', type=float, default=40)
    ap.add_argument('--dma_span', type=float, default=56)
    ap.add_argument('--dma_lead', type=float, default=0)
    ap.add_argument('--kvflag', default=' nt')
    ap.add_argument('--wflag', default='')
    ap.add_argument('--xflag', default='')
    ap.add_argument('--stflag', default='')
    ap.add_argument('--rdflag', default='')
    ap.add_argument('--codetouch', type=int, default=3)
    ap.add_argument('--touch', default='')
    ap.add_argument('-v', action='store_true')
    o = ap.parse_args(argv)
    for k in ('kvflag', 'wflag', 'xflag', 'stflag', 'rdflag'):
        v = getattr(o, k).strip().replace('+', ' ')
        setattr(o, k, (' ' + v) if v and v != 'none' else '')
    o.touch = [(float(x.split(':')[0]), int(x.split(':')[1])) for x in o.touch.split(',') if x]
    g = Gen(o)
    out = g.build()
    body = prologue(o)
    body += ''.join('    ' + t + '\n' for t, k in out)
    a = Asm()
    if o.stamps:
        k = STAMP0 + 4 * g.nstamp; ns = g.nstamp + 2
        a('s_waitcnt vmcnt(0)\ns_memrealtime s[%d:%d]\ns_memtime s[%d:%d]' % (k, k + 1, k + 2, k + 3))
        a('s_load_dwordx2 s[4:5], s[0:1], 96\ns_waitcnt lgkmcnt(0)\ns_cmp_lg_u32 s32, 0\ns_cbranch_scc1 L_end')
        a('s_mul_i32 s6, s2, %d\ns_add_u32 s6, s6, 280000000\nv_mov_b32 v8, s6' % (ns * 16))
        for s in range(ns):
            for j in range(4): a('v_mov_b32 v%d, s%d' % (4 + j, 56 + 4 * s + j))
            a('global_store_dwordx4 v8, v[4:7], s[4:5] offset:%d\ns_nop 3' % (16 * s))
        print('stamps: use --stamps %d' % (2 * ns))
    a('L_end:\ns_endpgm')
    a('L_restart:\ns_waitcnt vmcnt(0) lgkmcnt(0)\ns_barrier\ns_mov_b32 %s, -1\ns_branch L_start' % sMODE)
    body += a.text() + g.hook(0) + g.hook(1)
    kern = [dict(name='fused_kernel', grid=256, block=256, lds=LDS_BYTES, body=body, vgpr=512, sgpr=102, accum=256),
            dict(name='reduce_kernel', grid=1120, block=256, lds=0, body=reducer(o) + '    .fill 8192, 4, 0xBF800000\n', vgpr=48, sgpr=32, accum=48)]
    txt = build(kern)
    open(o.o, 'w').write(txt)
    tot, costs = estimate(out)
    nm = g.p.nm
    print('mfma %d  est cycles %d (ideal %d)  forced ops %d  instrs %d  bytes %d' % (nm, tot, nm * 16, g.p.stats['forced'], len(out), len(txt)))
    bounds = [0, 560, 1840, 2400, 3680, 4800]
    print('phase overhead:', [sum(c - 16 for i, c in costs if lo <= i < hi) for lo, hi in zip(bounds, bounds[1:])])
    if o.v:
        print('forced:', g.p.stats['forced_gaps'])
        print('over:', [(i, c) for i, c in costs if c > 16])

if __name__ == '__main__':
    main(sys.argv[1:])
```

```python
MEMLD = ('ldsr', 'ldsw', 'vld', 'vst', 'dma')
LGKM = ('ldsr', 'ldsw')
VM = ('vld', 'vst', 'dma')
SCALAR = ('salu', 'bar', 'br')
EXCL = ('trans', 'vld', 'vst', 'dma', 'ldsw')

def R(s):
    if isinstance(s, (list, tuple)):
        out = []
        for x in s: out += R(x)
        return out
    if len(s) > 1 and s[0] in 'vas' and s[1] == '[':
        lo, hi = s[2:-1].split(':')
        return ['%s%d' % (s[0], i) for i in range(int(lo), int(hi) + 1)]
    return [s]

class Op:
    __slots__ = ('text', 'kind', 'rd', 'wr', 'srcc', 'idx', 'preds', 'succs', 'nb', 'due', 'alap', 'asap', 'pos', 'gap',
                 'done', 'npred', 'mi', 'cnt', 'soft', 'swap', 'mind', 'nsucc', 'lim')
    def __init__(self, text, kind, rd, wr, srcc=(), nb=None, due=None, soft=None, swap=False, mind=None):
        self.text = text; self.kind = kind
        self.rd = R(rd); self.wr = R(wr); self.srcc = R(srcc)
        self.preds = []; self.succs = []
        self.mind = mind or {}; self.nb = nb; self.due = due; self.soft = soft; self.swap = swap
        self.pos = None; self.gap = None; self.done = False; self.mi = None; self.cnt = None

def isreg(r):
    return r[0] in 'va' and r[1:].isdigit()

class Prog:
    def __init__(self, lat_lds=7, lat_vm=40, late=1.0):
        self.ops = []
        self.lastw = {}; self.readers = {}
        self.nm = 0
        self.lat_lds = lat_lds; self.lat_vm = lat_vm; self.late = late
    def add(self, text, kind, rd=(), wr=(), **kw):
        op = Op(text, kind, rd, wr, **kw)
        op.idx = len(self.ops)
        if kind == 'mfma':
            op.mi = self.nm; self.nm += 1
        deps = {}
        def dep(p, dist, wait):
            if p is op: return
            d = deps.get(p.idx)
            if d is None: deps[p.idx] = [p, dist, wait]
            else:
                d[1] = max(d[1], dist); d[2] = d[2] or wait
        isv = kind in ('valu', 'trans')
        for r in op.rd + op.srcc:
            p = self.lastw.get(r)
            if p is None: continue
            dist = 0; wait = p.kind in MEMLD
            pv = p.kind in ('valu', 'trans')
            if isreg(r):
                if p.kind == 'mfma':
                    if kind == 'mfma' and r in op.srcc and r not in op.rd:
                        dist = 0 if op.srcc == p.wr else 6
                    else: dist = 8
                elif pv:
                    if kind == 'mfma': dist = 2
                    elif op.swap: dist = 2
                    elif p.kind == 'trans' and not p.swap: dist = 1
                    elif op.text.startswith('v_readfirstlane') or op.text.startswith('v_readlane'): dist = 1
            elif r == 'm0':
                dist = 1
            elif (r[0] == 's' and r[1:].isdigit()) or r == 'vcc':
                if pv:
                    dist = 5 if kind in VM else (2 if isv else 1)
            dist = max(dist, op.mind.get(r, 0))
            dep(p, dist, wait)
        for r in op.wr:
            p = self.lastw.get(r)
            if p is not None:
                dist = 0; wait = p.kind in MEMLD and isreg(r)
                if isreg(r) and p.kind == 'mfma' and kind != 'mfma': dist = 8
                dep(p, dist, wait)
            for q in self.readers.get(r, ()):
                dist = 0
                if isreg(r):
                    if q.kind == 'mfma' and r in q.srcc and kind != 'mfma': dist = 3
                    if q.kind == 'vst': dist = 2
                dep(q, dist, False)
        for r in op.wr:
            self.lastw[r] = op; self.readers[r] = []
        for r in op.rd + op.srcc:
            if r not in op.wr: self.readers.setdefault(r, []).append(op)
        op.preds = list(deps.values())
        for p, dist, wait in op.preds: p.succs.append((op, dist, wait))
        self.ops.append(op)
        return op

    def edge_lat(self, p, s, dist, wait):
        if wait:
            if s.soft is not None and p.kind in LGKM: return s.soft
            return self.lat_lds if p.kind in LGKM else (s.soft if (s.soft is not None and s.kind != 'bar') else self.lat_vm)
        return dist / 2.6

    def priorities(self):
        ops = self.ops; NM = self.nm
        for op in ops:
            if op.kind == 'mfma': op.asap = float(op.mi); continue
            a = -50.0
            for p, dist, wait in op.preds:
                lat = dist / 2.6 if not wait else (2.0 if p.kind in LGKM else 0.0)
                a = max(a, p.asap + lat + (0.0 if p.kind == 'mfma' else 0.3))
            if op.nb is not None: a = max(a, op.nb)
            op.asap = a
        for op in ops:
            op.nsucc = sum(1 for s, d, w in op.succs if s.kind != 'mfma'); op.alap = None
            lim = NM + 200.0
            if op.kind != 'mfma':
                for s, dist, wait in op.succs:
                    if s.kind == 'mfma': lim = min(lim, s.mi - 1 - max(0.0, self.edge_lat(op, s, dist, wait) - (0.0 if wait else 0.8)))
                if op.due is not None: lim = min(lim, op.due)
            op.lim = lim
        pool = [o for o in ops if o.kind != 'mfma' and o.nsucc == 0]
        def place(o, g):
            o.alap = g
            pool.remove(o)
            for p, dist, wait in o.preds:
                if p.kind == 'mfma': continue
                lat = self.edge_lat(p, o, dist, wait)
                if p.kind in VM and wait and p.due is not None: lat = 0.0
                p.lim = min(p.lim, g - lat)
                p.nsucc -= 1
                if p.nsucc == 0: pool.append(p)
        g = NM + 200
        while pool:
            g = min(g, int(max(o.lim for o in pool) // 1))
            vs = 2; lds = 1; sc = 1
            while True:
                c = [o for o in pool if o.lim >= g]
                if not c: break
                c.sort(key=lambda o: (-o.asap, -o.idx))
                pick = None
                for o in c:
                    k = o.kind
                    must = o.asap >= g or g < -1 or g >= NM
                    if k == 'bar':
                        if (lds and vs == 2) or must: pick = o; vs = min(vs, 1); lds = 0; sc = 0; break
                    elif k in SCALAR:
                        if sc or must: pick = o; sc = 0; break
                    elif k in EXCL:
                        if vs == 2 or must: pick = o; vs = 0; lds = 0; break
                    elif k == 'ldsr':
                        if (lds and vs) or must: pick = o; vs = max(0, vs - 1); lds = 0; break
                    else:
                        if vs == 2 or must or (vs == 1 and (not lds or not any(x.kind == 'ldsr' for x in c))):
                            pick = o; vs = max(0, vs - 1); break
                if pick is None: break
                place(pick, g)
            g -= 1
        for op in ops:
            if op.kind == 'mfma': op.alap = float(op.mi)

    def schedule(self):
        ops = self.ops
        self.priorities()
        out = []
        st = dict(n=0, lg=0, lgdone=0, vm=0, vmdone=0, gap=-1)
        for op in ops: op.npred = len(op.preds)
        ready = []
        def release(op):
            for s, dist, wait in op.succs:
                s.npred -= 1
                if s.npred == 0 and s.kind != 'mfma': ready.append(s)
        for op in ops:
            if op.npred == 0 and op.kind != 'mfma': ready.append(op)
        def emit_raw(text, kind, states=1):
            out.append((text, kind)); st['n'] += states
        def need_wait(oplist):
            lg = None; vm = None
            for op in oplist:
                for p, dist, wait in op.preds:
                    if not wait or not p.done: continue
                    if p.kind in LGKM:
                        if p.cnt > st['lgdone']: lg = max(lg or 0, p.cnt)
                    else:
                        if p.cnt > st['vmdone']: vm = max(vm or 0, p.cnt)
            return lg, vm
        def emit_wait(lg, vm):
            parts = []
            if vm is not None:
                n = min(63, st['vm'] - vm); parts.append('vmcnt(%d)' % n); st['vmdone'] = st['vm'] - n
            if lg is not None:
                n = min(15, st['lg'] - lg); parts.append('lgkmcnt(%d)' % n); st['lgdone'] = st['lg'] - n
            if parts: emit_raw('s_waitcnt ' + ' '.join(parts), 'wait')
        def dist_short(op, extra=0):
            sh = 0
            for p, dist, wait in op.preds:
                if dist: sh = max(sh, dist - (st['n'] + extra - p.pos - 1))
            return sh
        def emit(op):
            lg, vm = need_wait([op])
            if op.kind in LGKM and st['lg'] - st['lgdone'] >= 15: lg = max(lg or 0, st['lg'] - 12)
            emit_wait(lg, vm)
            sh = dist_short(op)
            if sh > 0: emit_raw('s_nop %d' % (sh - 1), 'nop', sh)
            op.pos = st['n']; op.gap = st['gap']; op.done = True
            if op.kind in LGKM: st['lg'] += 1; op.cnt = st['lg']
            if op.kind in VM: st['vm'] += 1; op.cnt = st['vm']
            emit_raw(op.text, op.kind)
            if op.kind != 'mfma': ready.remove(op)
            release(op)
        def force(op, strict=False):
            todo = []; seen = set()
            stack = [op]
            while stack:
                o = stack.pop()
                for p, dist, wait in o.preds:
                    if not p.done and p.idx not in seen:
                        assert p.kind != 'mfma', ('mfma order violated', o.text, p.text)
                        seen.add(p.idx); todo.append(p); stack.append(p)
            todo.sort(key=lambda o: o.idx)
            while todo:
                pick = None
                if strict:
                    pick = next((o for o in todo[:4] if o.npred == 0 and dist_short(o) <= 0 and (o is todo[0] or (o.kind == 'valu' and need_wait([o]) == (None, None)))), todo[0])
                    emit(pick); todo.remove(pick); continue
                for o in todo:
                    if o.npred == 0 and dist_short(o) <= 0 and need_wait([o]) == (None, None): pick = o; break
                if pick is None:
                    for o in todo:
                        if o.npred == 0 and dist_short(o) <= 0: pick = o; break
                if pick is None:
                    for o in todo:
                        if o.npred == 0: pick = o; break
                emit(pick); todo.remove(pick)
            return len(seen)
        def ok(op, g):
            if op.nb is not None and g < op.nb: return False
            if dist_short(op) > 0: return False
            for p, dist, wait in op.preds:
                if wait:
                    done = p.cnt <= (st['lgdone'] if p.kind in LGKM else st['vmdone'])
                    if not done and g - p.gap < self.edge_lat(p, op, dist, wait) and op.alap > g: return False
            return True
        def lgfull(g):
            return st['lg'] - st['lgdone'] >= 15
        mf = [o for o in ops if o.kind == 'mfma']
        stats = dict(forced=0, forced_gaps=[])
        key = lambda o: (o.alap, o.idx)
        for i, m in enumerate(mf):
            nf = force(m)
            if nf and i > 0: stats['forced'] += nf; stats['forced_gaps'].append((i, nf))
            emit(m)
            st['gap'] = i
            nxt = mf[i + 1] if i + 1 < len(mf) else None
            if nxt is None: break
            cand = sorted((o for o in ready if ok(o, i)), key=key)
            vec = [o for o in cand if o.kind not in SCALAR]
            sca = [o for o in cand if o.kind in SCALAR]
            bar = next((o for o in sca if o.kind == 'bar'), None)
            if bar is not None and (not vec or bar.alap <= vec[0].alap or vec[0].kind == 'valu'):
                lg, vm = need_wait([bar, nxt]); w = lg is not None or vm is not None
                emit_wait(lg, vm); emit(bar)
                left = 1 if w else 2
                for o in vec:
                    if left and o.kind == 'valu' and need_wait([o]) == (None, None) and dist_short(o) <= 0:
                        emit(o); left -= 1
                continue
            sca = [o for o in sca if o.kind != 'bar']
            chosen = []; slots = 2
            if vec:
                first = vec[0]
                mem = next((o for o in vec if o.kind == 'ldsr'), None)
                if first.kind == 'valu' and mem is not None:
                    v2 = next((o for o in vec if o.kind == 'valu' and o is not first), None)
                    chosen = [first, v2] if (v2 is not None and v2.alap <= i and mem.alap > i + 1) else [mem, first]
                else: chosen = [first]
                used = sum(2 if o.kind in EXCL else 1 for o in chosen)
                if used < 2:
                    o2 = next((o for o in vec if o.kind == 'valu' and o not in chosen), None)
                    if o2 is not None: chosen.append(o2); used += 1
                slots = 2 - used
                lateop = next((o for o in vec if o not in chosen and o.alap <= i - self.late
                               and not (o.kind in MEMLD and sum(x.kind in MEMLD for x in chosen) >= 2)), None)
                if lateop is not None:
                    if lateop.kind in EXCL and chosen[-1].kind == 'valu' and chosen[-1].alap > i - self.late and len(chosen) > 1: chosen.pop()
                    chosen.append(lateop); slots = 0
                    chosen.sort(key=lambda o: (0 if o.kind == 'ldsr' else 1 if o.kind in MEMLD else 2))
            lg, vm = need_wait(chosen + [nxt])
            if any(o.kind in LGKM for o in chosen) and st['lg'] - max(st['lgdone'], lg or 0) >= 14: lg = max(lg or 0, st['lg'] - 12)
            if lg is not None or vm is not None:
                emit_wait(lg, vm)
                if sca and slots == 0 and chosen[-1].kind == 'valu' and sca[0].alap < chosen[-1].alap:
                    chosen.pop(); slots = 1
            elif sca:
                emit(sca.pop(0))
            for o in chosen:
                if dist_short(o) <= 0: emit(o)
                else: slots += 1
            while slots > 0:
                c2 = sorted((o for o in ready if o.kind in ('valu', 'salu', 'br') and ok(o, i) and need_wait([o]) == (None, None)), key=key)
                if not c2: break
                emit(c2[0]); slots -= 1
            c3 = [o for o in ready if o.kind in ('salu', 'br') and o.alap <= i - self.late and ok(o, i) and need_wait([o]) == (None, None)]
            if c3: emit(min(c3, key=key))
        class Dummy: pass
        d = Dummy(); d.preds = [(o, 0, False) for o in ops if not o.done]; d.text = 'tail'
        force(d, True)
        self.out = out; self.stats = stats
        return out

def estimate(out, lds_lat=100):
    import re
    t = 0; tm = None; costs = []; mi = -1; prev = None
    lq = []
    for txt, k in out:
        if k == 'mfma':
            if tm is not None:
                t = max(t, tm + 16); costs.append((mi, t - tm))
            tm = t; mi += 1; t += 4; prev = k; continue
        if k == 'wait':
            m = re.search(r'lgkmcnt\((\d+)\)', txt)
            if m:
                n = int(m.group(1))
                if len(lq) > n: t = max(t, lq[len(lq) - n - 1])
            t += 4
        elif k in ('salu', 'bar', 'br'): t += 4 * len([l for l in txt.split('\n') if not l.endswith(':')])
        elif k == 'nop': t += 4 * (int(txt.split()[1]) + 1)
        else:
            if tm is not None: t = max(t, tm + 8)
            if k in MEMLD:
                if prev in ('valu', 'trans'): t += 8
                elif tm is not None and t > tm + 8 and prev in ('wait', 'salu', 'bar', 'br', 'nop'): t += 8
                elif prev == 'ldsr' and k == 'ldsr': t += 4
            if k in LGKM: lq.append(t + lds_lat)
            t += {'valu': 4, 'trans': 8, 'ldsr': 4, 'ldsw': 20, 'vld': 8, 'vst': 8, 'dma': 8}[k]
        prev = k
    return t, costs
```

```python
import sys, argparse, struct
from asmlib import *
from sched import Prog, estimate

SLOT = 33792; PAIR = 2 * SLOT
EX = 4 * SLOT; EXW = 7168
LDS_BYTES = 163840
SCALE = struct.unpack('<I', struct.pack('<f', 1.4426950408889634 / 16.0))[0]
PREG = 35 * 8192
PSTRIDE = PREG + 1024

def q(f, n): return '%s[%d:%d]' % (f, 4 * n, 4 * n + 3)
def VQ(n): return q('v', n)
def AQ(n): return q('a', n)
def reg(quad, i):
    f = quad[0]; lo = int(quad[2:-1].split(':')[0]); return '%s%d' % (f, lo + i)
def half(quad, h):
    f = quad[0]; lo = int(quad[2:-1].split(':')[0]) + 2 * h; return '%s[%d:%d]' % (f, lo, lo + 1)

aK = [['v0', 'v1'], ['v2', 'v3']]; aV = [['v4', 'v5'], ['v6', 'v7']]; aW = [['v8', 'v9'], ['v10', 'v11']]
aXab, aXs, aEab, aEs = 'v0', 'v1', 'v2', 'v3'
vP, vC, vO, vF = 'v0', 'v1', 'v2', 'v3'
vLIN, vWROW, vX, vTOUCH, aEXw, aEXr = 'v12', 'v13', 'v14', 'v15', 'v16', 'v17'
vL = {'a': 'v18', 'b': 'v19', 's': 'v20'}
vT = ['v21', 'v22', 'v23']
NEGM = {'a': VQ(6), 'b': VQ(7), 's': VQ(8)}
SQ = [VQ(9 + i) for i in range(5)]
PQ = [VQ(14 + i) for i in range(10)]
BIG = [VQ(24 + i) for i in range(40)]
FR = [AQ(i) for i in range(10)]
PX = [AQ(10), AQ(11)]
OPART0 = [AQ(12 + i) for i in range(4)]
QPART1 = [AQ(16 + i) for i in range(4)]
ABIG = [AQ(20 + i) for i in range(42)]
aTOUCH = 'a252'
sX, sK, sV, sWQ, sWO, sWS = 's[8:11]', 's[12:15]', 's[16:19]', 's[20:23]', 's[24:27]', 's[28:31]'
sW, sPAR, sW8448, sWPAD = 's32', 's33', 's34', 's35'
sXA, sXS, sJ = 's36', 's37', 's38'
sSOFF = ['s40', 's41']; sSCALE, sMODE, sLO, sHI = 's42', 's43', 's44', 's45'
sBAD = 's[46:47]'; sCMP = 's[48:49]'; sTMP = 's50'; sST = 's51'; sTCH = 's52'; sHK = 's53'
sPC = 's[54:55]'
sOUT, sDBG = 's[4:7]', 's[96:99]'
sXSM, sEXM = 's39', 's3'
sOB = 's100'; sT2 = 's101'; sSHX, sSHW = 's61', 's62'
sJOB = ['s56', 's57', 's58', 's59', 's60']
STAMP0 = 64

class Tile:
    def __init__(self, name, kind, arg): self.name, self.kind, self.arg = name, kind, arg; self.slot = None; self.nd = 0
    @property
    def tok(self): return 'T_' + self.name

class Gen:
    def __init__(self, o):
        self.o = o
        self.p = Prog(lat_lds=o.lat_lds, lat_vm=o.lat_vm, late=o.late)
        self.pair = {}
        self.frl = FR; self.fri = 0
        self.si = 0; self.soi = 0; self.exi = 0; self.exq = 0; self.tq = 0
        self.nbar = 0
        self.bar_ex = {}
        self.after_bar = {}
        self.nstamp = 0
        self.spins = []
    def valu(self, t, rd, wr, **k): return self.p.add(t, 'valu', rd, wr, **k)
    def salu(self, t, rd, wr, **k): return self.p.add(t, 'salu', rd, wr, **k)
    def vops(self, lines):
        for l in lines:
            ops = [x.strip() for x in l.split(None, 1)[1].split(',')]
            rd = [x for x in ops[1:] if x[0] in 'vs' and x[1:].isdigit()]
            (self.salu if l.startswith('s_') else self.valu)(l, rd, [ops[0]])
    def mfma(self, d, a, b, c, extra=()):
        self.p.add('v_mfma_f32_16x16x32_bf16 %s, %s, %s, %s' % (d, a, b, c), 'mfma', [a, b] + list(extra), [d], srcc=([] if c == '0' else [c]))
    def frag(self):
        f = self.frl[self.fri % len(self.frl)]; self.fri += 1; return f
    def setfr(self, l):
        self.frl = l; self.fri = 0
    def base(self, r, t):
        pr = t.slot >> 1
        if self.pair.get(r, 0) != pr:
            self.valu(('v_add_u32 %s, %d, %s' if pr else 'v_subrev_u32 %s, %d, %s') % (r, PAIR, r), [r], [r])
            self.pair[r] = pr
        return (t.slot & 1) * SLOT
    def tstamp(self, n):
        o = self.o
        if o.stamps != 2 or n not in o.stiles: return ''
        k = STAMP0 + 2 + 2 * self.nstamp; self.nstamp += 1
        return '\n    s_memtime s[%d:%d]' % (k, k + 1)
    def stamp(self):
        if self.o.stamps != 1: return
        k = STAMP0 + 4 + 4 * self.nstamp; self.nstamp += 1
        self.salu('s_memrealtime s[%d:%d]\n    s_memtime s[%d:%d]' % (k, k + 1, k + 2, k + 3), [], ['STAMP'], nb=self.p.nm, due=self.p.nm)
    def soff(self):
        so = sSOFF[self.soi & 1]; self.soi += 1; return so
    def kvoff(self, h, i, extra):
        if not self.o.rot: return ('s_mov_b32 %s, ' + str(h * 262144 + i * 32768 + extra), [])
        t = 's_add_u32 %%s, s63, %d|s_and_b32 %%s, %%s, 0x3ffff' % (i * 32768 + extra)
        if h: t += '|s_bitset1_b32 %s, 18'
        return (t, ['s63'])
    def dma(self, t, tok, g0, span):
        o = self.o; kind = t.kind
        slot = t.slot * SLOT if t.slot is not None else None
        items = []
        if kind in ('k', 'v'):
            h, i = t.arg
            for j in range(8):
                items.append((self.kvoff(h, i, (j >> 2) * 4096) if j % 4 == 0 else None,
                              (sW8448, slot + 32 * j + 4096 * (j >> 2)), vLIN, sK if kind == 'k' else sV, (j & 3) * 1024, o.kvflag))
        elif kind == 'wq':
            h, m, hf = t.arg
            for j in range(8 if hf else 6):
                items.append((('s_mov_b32 %s, ' + str((192 * hf + 32 * j) * 8192 + h * 512 + m * 128), []), (sWPAD, slot + 4224 * j), vWROW, sWQ, 0, o.wflag))
        elif kind == 'wo':
            h, m = t.arg
            for j in range(8):
                items.append((('s_mov_b32 %s, ' + str((h * 256 + 32 * j) * 896 + m * 128), []), (sWPAD, slot + 4224 * j), vWROW, sWO, 0, o.wflag))
        else:
            for (qt, p, pos) in t.arg:
                if kind == 'x': ab, sm, hs, b0 = sW8448, sXSM, 2112, slot
                else: ab, sm, hs, b0 = sEXM, sEXM, 2048, 0
                if qt == 's': items.append((('s_add_u32 %%s, %s, %d' % (sXS, 128 * p), [sXS]), (sm, b0 + pos), vX, sX, 0, o.xflag))
                else:
                    for hf in range(2):
                        items.append((('s_add_u32 %%s, %s, %d' % (sXA, 128 * p + 7168 * hf + (14336 if qt == 'b' else 0)), [sXA]),
                                      (ab, b0 + pos + hs * hf), vX, sX, 0, o.xflag))
        t.nd = len(items); so = None
        for j, (ss, (mb, mo), vo, srd, imm, fl) in enumerate(items):
            if ss is not None:
                so = self.soff()
                for l in ss[0].split('|'): self.salu(l.replace('%s', so), ss[1] + [so], [so])
            self.salu('s_add_u32 m0, %s, %d' % (mb, mo), [mb], ['m0'])
            self.p.add('buffer_load_dwordx4 %s, %s, %s offen offset:%d%s lds' % (vo, srd, so, imm, fl), 'dma', [vo, so, 'm0', tok],
                       ['D_%s_%d' % (t.name, j)], due=g0 + (j + 1) * span / len(items), mind={tok: (6 if tok != 'PRE' else 0)})
    def touch(self, t, nb, tok=None):
        extra = [tok] if tok else []
        if t.kind in ('k', 'v'):
            h, i = t.arg
            for l in self.kvoff(h, i, 0)[0].split('|'): self.salu(l.replace('%s', sTCH), [sTCH], [sTCH])
            vo, srd, fl = vTOUCH, sK if t.kind == 'k' else sV, self.o.kvflag
        else:
            h, m, hf = t.arg
            vo = vT[2]
            self.valu('v_lshlrev_b32 %s, 6, %s' % (vo, vTOUCH), [vTOUCH], [vo])
            self.salu('s_mov_b32 %s, %d' % (sTCH, 192 * hf * 8192 + h * 512 + m * 128), [], [sTCH])
            srd, fl = sWQ, self.o.wflag
        self.p.add('buffer_load_dword %s, %s, %s, %s offen%s' % (aTOUCH, vo, srd, sTCH, fl), 'vld', [vo, sTCH] + extra, [], nb=nb, due=nb)
    def ctouch(self, kind, arg, nb, tok=None):
        o = self.o; nx, nw = {'A': (8, 4), 'B': (2, 16), 'C': (4, 8)}[o.map]
        t0, t1 = vT[1], vT[2]
        if kind == 'x':
            p0, lg = arg; rows = 160 // nx; stride = 896; srd = sX; fl = o.xflag; sh = sSHX; col0 = 128 * p0; ncol = min(1 << lg, 7 - p0); base = 0
        elif kind == 'wq':
            h, m0, lg = arg; rows = 448 // nw; stride = 8192; srd = sWQ; fl = o.wflag; sh = sSHW; col0 = 512 * h + 128 * m0; ncol = min(1 << lg, 4 - m0); base = 0
        else:
            m0, lg = arg; rows = 512 // nw; stride = 896; srd = sWO; fl = o.wflag; sh = sSHW; col0 = 128 * m0; ncol = min(1 << lg, 7 - m0); base = 0
        for r0 in range(0, rows, 256 >> lg):
            n = min(rows - r0, 256 >> lg)
            self.vops(['v_lshrrev_b32 %s, %d, %s' % (t0, 7 + lg, vTOUCH), 'v_bfe_u32 %s, %s, 7, %d' % (t1, vTOUCH, lg)])
            self.valu('v_cmp_gt_u32 vcc, %d, %s' % (n, t0), [t0], ['vcc'])
            self.vops(['v_mul_u32_u24 %s, %d, %s' % (t0, stride, t0), 'v_lshl_add_u32 %s, %s, 7, %s' % (t0, t1, t0)])
            self.valu('v_cndmask_b32 %s, 2.0, %s, vcc' % (t0, t0), [t0, 'vcc'], [t0])
            if ncol < (1 << lg):
                self.valu('v_cmp_gt_u32 vcc, %d, %s' % (ncol, t1), [t1], ['vcc'])
                self.valu('v_cndmask_b32 %s, 2.0, %s, vcc' % (t0, t0), [t0, 'vcc'], [t0])
            self.vops(['s_mul_i32 %s, %s, %d' % (sTCH, sh, rows * stride), 's_add_u32 %s, %s, %d' % (sTCH, sTCH, base + r0 * stride + col0)])
            self.p.add('buffer_load_dword %s, %s, %s, %s offen%s' % (aTOUCH, t0, srd, sTCH, fl), 'vld', [t0, sTCH] + ([tok] if tok else []), [], nb=nb, due=nb)
            if nb is not None: nb += 40
    def bar(self, ready=(), free=(), issue=(), span=None, lead=None, waitregs=()):
        n = self.nbar; self.nbar += 1
        rd = ['D_%s_%d' % (t.name, j) for t in ready for j in range(t.nd)] + self.bar_ex.pop(n, []) + list(waitregs)
        wr = ['B%d' % n, 'B%d' % (n - 1)] + [t.tok for t in list(ready) + list(free)] + (['PRE'] if n == 0 else [])
        self.p.add('s_barrier' + self.tstamp(n), 'bar', rd, wr, soft=3)
        g = self.p.nm
        span = self.o.dma_span if span is None else span
        lead = self.o.dma_lead if lead is None else lead
        for k, (t, slot) in enumerate(issue):
            t.slot = slot
            if t.kind == 'wo' and t.arg == (0, 0): self.wo_rowpat()
            self.dma(t, 'B%d' % n, g + lead + k * span / len(issue), span / len(issue))
        for (t, dg) in self.touch_plan.pop(n, []):
            if isinstance(t, tuple): self.ctouch(t[0], t[1], g + dg)
            else: self.touch(t, g + dg)
        if self.o.codetouch and n >= 4 and n % self.o.codetouch == 1:
            t = vT[2]
            self.vops(['v_lshrrev_b32 %s, 9, %s' % (t, vTOUCH), 'v_lshlrev_b32 %s, 7, %s' % (t, t), 'v_add_u32 %s, %d, %s' % (t, self.o.ct_lead, t)])
            self.salu('s_getpc_b64 s[54:55]', ['B%d' % n], [sPC], nb=g + 28, due=g + 28)
            self.p.add('global_load_dword %s, %s, %s' % (aTOUCH, t, sPC), 'vld', [t, sPC], [], nb=g + 30, due=g + 30)
        for cb in self.after_bar.pop(n, []): cb('B%d' % n)
        return n
    def exwrite(self, text, src, wbar):
        tok = 'EX%d' % self.exi; self.exi += 1
        self.p.add(text, 'ldsw', [aEXw, src], [tok])
        self.bar_ex.setdefault(wbar, []).append(tok)
    def exchange(self, src, dst, off, wbar, rbar):
        self.exwrite('ds_write_b128 %s, %s offset:%d' % (aEXw, src, off), src, wbar)
        self.after_bar.setdefault(rbar, []).append(
            lambda b: self.p.add('ds_read_b128 %s, %s offset:%d' % (dst, aEXr, off), 'ldsr', [aEXr, b], [dst]))
    def rot(self):
        r = (self.exq & 1) * 1024; self.exq += 1; return r
    def trread(self, t, r, imm):
        f = self.frag(); b = self.base(r, t)
        for jj in range(2):
            self.p.add('ds_read_b64_tr_b16 %s, %s offset:%d' % (half(f, jj), r, b + imm(jj)), 'ldsr', [r, t.tok], [half(f, jj)])
        return f
    def xread(self, t, X):
        for (qt, p, pos) in t.arg:
            if t.kind == 'x': r = aXs if qt == 's' else aXab; b = self.base(r, t)
            else: r = aEs if qt == 's' else aEab; b = 0
            for e in range(2):
                d = X[qt][2 * p + e]
                self.p.add('ds_read_b128 %s, %s offset:%d' % (d, r, b + pos + 64 * e), 'ldsr', [r, t.tok], [d])
    def lane(self, t):
        self.vops(['v_bfe_u32 %s, %s, 4, 6' % (t, vLIN)])
    def x_addr(self):
        t0, t1, t2 = vT
        self.lane(t0)
        self.vops(['v_lshrrev_b32 %s, 4, %s' % (t1, t0), 'v_bfe_u32 %s, %s, 1, 2' % (t2, t0), 'v_xor_b32 %s, %s, %s' % (t1, t1, t2),
                   'v_and_b32 %s, 7, %s' % (t2, t0), 'v_lshlrev_b32 %s, 7, %s' % (t2, t2), 'v_lshl_add_u32 %s, %s, 4, %s' % (t1, t1, t2),
                   'v_bfe_u32 %s, %s, 3, 1' % (t0, t0),
                   'v_mul_u32_u24 %s, 2112, %s' % (t2, t0), 'v_add3_u32 %s, %s, %s, %s' % (aXab, t1, t2, sW8448),
                   'v_lshlrev_b32 %s, 11, %s' % (t2, t0), 'v_add3_u32 %s, %s, %s, %s' % (aEab, t1, t2, sEXM),
                   's_and_b32 %s, %s, 2' % (sTMP, sW), 's_mul_i32 %s, %s, 8448' % (sT2, sTMP),
                   'v_mul_u32_u24 %s, 8512, %s' % (t2, t0), 'v_add3_u32 %s, %s, %s, %s' % (aXs, t1, t2, sT2),
                   's_mul_i32 %s, %s, %d' % (sT2, sTMP, EXW), 's_add_u32 %s, %s, %d' % (sT2, sT2, EX),
                   'v_mul_u32_u24 %s, %d, %s' % (t2, EXW, t0), 'v_add3_u32 %s, %s, %s, %s' % (aEs, t1, t2, sT2)])
        for r in (aXab, aXs, aEab, aEs): self.pair[r] = 0
    def k_addr(self):
        t0, t1, t2 = vT
        self.lane(t0)
        self.vops(['v_and_b32 %s, 15, %s' % (t1, t0), 'v_mul_u32_u24 %s, 1056, %s' % (t1, t1), 'v_and_b32 %s, 48, %s' % (t0, t0),
                   's_mul_i32 %s, %s, 16960' % (sTMP, sPAR), 'v_add3_u32 %s, %s, %s, %s' % (aK[0][0], t0, t1, sTMP),
                   's_sub_u32 %s, 16960, %s' % (sTMP, sTMP), 'v_add3_u32 %s, %s, %s, %s' % (aK[1][1], t0, t1, sTMP),
                   's_mul_i32 %s, %s, 16832' % (sT2, sPAR), 's_add_u32 %s, %s, 64' % (sT2, sT2), 'v_add3_u32 %s, %s, %s, %s' % (aK[0][1], t0, t1, sT2),
                   's_sub_u32 %s, 16960, %s' % (sT2, sT2), 'v_add3_u32 %s, %s, %s, %s' % (aK[1][0], t0, t1, sT2)])
        for r in aK[0] + aK[1]: self.pair[r] = 0
    def wo_rowpat(self):
        t0, t1, t2 = vT
        self.lane(t0)
        self.vops(['v_and_b32 %s, 16, %s' % (t1, t0), 'v_bfe_u32 %s, %s, 5, 1' % (t2, t0), 'v_lshl_add_u32 %s, %s, 3, %s' % (t1, t2, t1),
                   'v_bfe_u32 %s, %s, 3, 1' % (t2, t0), 'v_add_u32 %s, %s, %s' % (t1, t1, t2), 'v_lshl_add_u32 %s, %s, 1, %s' % (t1, sW, t1),
                   'v_mul_u32_u24 %s, 896, %s' % (t1, t1), 'v_and_b32 %s, 7, %s' % (t0, t0), 'v_lshl_add_u32 %s, %s, 4, %s' % (vWROW, t0, t1),
                   's_mul_i32 %s, %s, 4224' % (sTMP, sPAR), 's_sub_u32 %s, 4224, %s' % (sT2, sTMP)])
        for c in range(2):
            self.vops(['v_add_u32 %s, %s, %s' % (aW[1][c], sT2, aW[0][c]), 'v_add_u32 %s, %s, %s' % (aW[0][c], sTMP, aW[0][c])])
            self.pair[aW[1][c]] = self.pair.get(aW[0][c], 0)
    def qtile(self, t, X, Q, mid=None):
        h, m, hf = t.arg
        acc = self.qacc; nk = 8 if hf else 6
        for dt in range(4):
            if mid and dt in mid: mid[dt]()
            fr = [self.trread(t, aW[0][dt >> 1], lambda jj, ks=ks: ks * 4224 + jj * 256 + 8 * (dt & 1)) for ks in range(nk)]
            for qt in (('s', 'a', 'b') if dt < 2 else ('a', 'b')):
                A = acc[(dt, qt)]
                for ks in range(nk):
                    self.mfma(A, fr[ks], X[qt][6 * hf + ks], '0' if (hf == 0 and ks == 0) else A, (fr + ['B1']) if self.p.nm == 0 else ())
                if hf == 1:
                    for i in range(4): self.valu('v_mul_f32 %s, %s, %s' % (reg(A, i), sSCALE, reg(A, i)), [sSCALE, reg(A, i)], [reg(A, i)])
                    tq = 2 * m + (dt >> 1); dst = Q[qt][tq]
                    D = dst if dst[0] == 'v' else acc[(dt & 2, qt)]
                    for i in range(2):
                        dd = reg(D, 2 * (dt & 1) + i)
                        self.valu('v_cvt_pk_bf16_f32 %s, %s, %s' % (dd, reg(A, 2 * i), reg(A, 2 * i + 1)), [reg(A, 2 * i), reg(A, 2 * i + 1)], [dd])
                        if dst[0] == 'a': self.valu('v_accvgpr_write_b32 %s, %s' % (reg(dst, 2 * (dt & 1) + i), dd), [dd], [reg(dst, 2 * (dt & 1) + i)])
                    if (dt & 1) and qt == 's': self.exchange(D, Q['s'][tq + 1], self.rot(), self.nbar, self.nbar)
    def qk(self, i, t, Q, rbar):
        P = self.P[i & 1]
        for ks in range(2):
            for jj in range(2):
                fr = []
                for u in range(8):
                    f = self.frag(); r = aK[ks][u & 1]; b = self.base(r, t)
                    self.p.add('ds_read_b128 %s, %s offset:%d' % (f, r, b + jj * 512 + 128 * (u >> 1)), 'ldsr', [r, t.tok], [f])
                    fr.append(f)
                for qt in (('s', 'a', 'b') if ks == 0 else ('a', 'b')):
                    S = SQ[self.si % len(SQ)]; self.si += 1
                    for u in range(8): self.mfma(S, fr[u], Q[qt][u], NEGM[qt] if u == 0 else S)
                    for e in range(4): self.p.add('v_exp_f32 %s, %s' % (reg(S, e), reg(S, e)), 'trans', [reg(S, e)], [reg(S, e)])
                    D = P[qt][ks]
                    for e in range(2):
                        self.valu('v_cvt_pk_bf16_f32 %s, %s, %s' % (reg(D, 2 * jj + e), reg(S, 2 * e), reg(S, 2 * e + 1)),
                                  [reg(S, 2 * e), reg(S, 2 * e + 1)], [reg(D, 2 * jj + e)])
                    for e in range(4): self.valu('v_add_f32 %s, %s, %s' % (vL[qt], vL[qt], reg(S, e)), [vL[qt], reg(S, e)], [vL[qt]])
                    if qt == 's' and jj == 1: self.exchange(D, P['s'][1], self.rot(), rbar, rbar)
    def xreduce(self, r, op):
        t = vT[0]
        for sw in ('32', '16'):
            self.valu('v_mov_b32 %s, %s' % (t, r), [r], [t])
            self.p.add('v_permlane%s_swap_b32 %s, %s' % (sw, r, t), 'trans', [r, t], [r, t], swap=True)
            self.valu('%s %s, %s, %s' % (op, r, r, t), [r, t], [r])
    def lfinish(self, h, btok):
        for qt in 'sab': self.xreduce(vL[qt], 'v_add_f32')
        off = self.rot(); n7 = self.nbar
        tok = 'EX%d' % self.exi; self.exi += 1
        self.p.add('ds_write_b32 %s, %s offset:%d' % (aEXw, vL['s'], off), 'ldsw', [aEXw, vL['s'], btok], [tok])
        self.bar_ex.setdefault(n7, []).append(tok)
        def fin(b):
            t = vT[1]
            self.p.add('ds_read_b32 %s, %s offset:%d' % (t, aEXr, off), 'ldsr', [aEXr, b], [t])
            self.valu('v_add_f32 %s, %s, %s' % (vL['s'], vL['s'], t), [vL['s'], t], [vL['s']])
            ls = [vL[x] for x in 'abs']
            self.valu('v_min3_f32 %s, %s, %s, %s' % (t, *ls), ls, [t])
            self.valu('v_cmp_gt_f32 %s, %s, %s' % (sCMP, sLO, t), [sLO, t], [sCMP])
            self.salu('s_or_b64 %s, %s, %s' % (sBAD, sBAD, sCMP), [sBAD, sCMP], [sBAD])
            self.valu('v_max3_f32 %s, %s, %s, %s' % (t, *ls), ls, [t])
            self.valu('v_cmp_lt_f32 %s, %s, %s' % (sCMP, sHI, t), [sHI, t], [sCMP])
            self.salu('s_or_b64 %s, %s, %s' % (sBAD, sBAD, sCMP), [sBAD, sCMP], [sBAD])
            for x in 'abs': self.p.add('v_rcp_f32 %s, %s' % (vL[x], vL[x]), 'trans', [vL[x]], [vL[x]])
            if h == 1:
                off2 = self.rot()
                self.salu('s_or_b32 %s, s46, s47' % sTMP, [sBAD], [sTMP])
                self.salu('s_andn2_b32 %s, %s, %s' % (sTMP, sTMP, sMODE), [sTMP, sMODE], [sTMP])
                self.valu('v_mov_b32 %s, %s' % (t, sTMP), [sTMP], [t])
                self.exwrite('ds_write_b32 %s, %s offset:%d' % (aEXw, t, off2), t, n7 + 1)
                def vote(b3):
                    t2 = vT[2]
                    self.vops(['v_bfe_u32 %s, %s, 4, 2' % (t2, vLIN), 'v_mul_u32_u24 %s, %d, %s' % (t2, EXW, t2), 'v_add_u32 %s, %d, %s' % (t2, EX + off2, t2)])
                    self.p.add('ds_read_b32 %s, %s' % (t2, t2), 'ldsr', [t2, b3], [t2])
                    self.valu('v_cmp_ne_u32 vcc, 0, %s' % t2, [t2], ['vcc'])
                    self.p.add('s_cmp_lg_u64 vcc, 0\n    s_cbranch_scc1 L_restart', 'br', ['vcc'], ['OKGO'], mind={'vcc': 5})
                self.after_bar.setdefault(n7 + 1, []).append(vote)
        self.after_bar.setdefault(n7, []).append(fin)
    def pv(self, i, t, O, OB):
        P = self.P[i & 1]
        for dt in range(16):
            c = (dt >> 1) & 1
            f = [self.trread(t, aV[ks][c], lambda jj: jj * 512 + 128 * (dt >> 2) + 32 * (dt & 1)) for ks in range(2)]
            seq = [('a', 0), ('a', 1), ('b', 1), ('b', 0)] + ([('s', 0), ('s', 1)] if c == 0 else [])
            for k, (qt, ks) in enumerate(seq):
                A = O[qt][dt]
                self.mfma(A, f[ks], P[qt][ks], '0' if (i == 0 and k % 2 == 0) else A)
            if i == 7 and (dt & 1):
                for qt in (('s', 'a', 'b') if c == 0 else ('a', 'b')):
                    D = OB[qt][dt >> 1]
                    for jj in range(2):
                        A = O[qt][dt - 1 + jj]
                        if A[0] == 'a':
                            T = D if jj == 0 else list(NEGM.values())[self.tq % 3]
                            if jj: self.tq += 1
                            for e in range(4): self.valu('v_accvgpr_read_b32 %s, %s' % (reg(T, e), reg(A, e)), [reg(A, e)], [reg(T, e)])
                            A = T
                        for e in range(4): self.valu('v_mul_f32 %s, %s, %s' % (reg(A, e), vL[qt], reg(A, e)), [vL[qt], reg(A, e)], [reg(A, e)])
                        for e in range(2):
                            self.valu('v_cvt_pk_bf16_f32 %s, %s, %s' % (reg(D, 2 * jj + e), reg(A, 2 * e), reg(A, 2 * e + 1)),
                                      [reg(A, 2 * e), reg(A, 2 * e + 1)], [reg(D, 2 * jj + e)])
                    if qt == 's':
                        nb = self.nbar + self.osdelay
                        self.exchange(D, OB['s'][(dt >> 1) + 1], 2048 + (dt >> 2) * 1024, nb, nb)
    def hookop(self, h, Q, tmp):
        allq = [x for qt in 'sab' for x in Q[qt]]
        self.p.add('s_cmp_lg_u32 %s, 0\n    s_cbranch_scc1 L_hook%d\nL_ret%d:' % (sMODE, h, h), 'br', allq + [sMODE],
                   list(NEGM.values()) + list(vL.values()) + vT + SQ[:3] + tmp + [sTMP, sHK])
        for qt in 'sab': self.valu('v_mov_b32 %s, 0' % vL[qt], [], [vL[qt]])
    def otile(self, t, OB):
        h, m = t.arg; acc = self.oacc
        for nt in range(4):
            fr = [self.trread(t, aW[u & 1][nt >> 1], lambda jj, u=u: (u >> 1) * 8448 + jj * 256 + 8 * (nt & 1)) for u in range(8)]
            for qt in (('a', 'b', 's') if nt < 2 else ('a', 'b')):
                A = acc[(nt, qt)]
                for u in range(8): self.mfma(A, fr[u], OB[h][qt][u], '0' if (h == 0 and u == 0) else A)
                if h == 1:
                    D = acc[(nt & 2, qt)]
                    for e in range(2):
                        self.valu('v_cvt_pk_bf16_f32 %s, %s, %s' % (reg(D, 2 * (nt & 1) + e), reg(A, 2 * e), reg(A, 2 * e + 1)),
                                  [reg(A, 2 * e), reg(A, 2 * e + 1)], [reg(D, 2 * (nt & 1) + e)])
                    if nt & 1:
                        c = 5 * m + {'a': 0, 'b': 1, 's': 2}[qt] + 3 * (nt >> 1)
                        self.salu('s_mov_b32 %s, %d' % (sST, c * 8192), [], [sST])
                        self.p.add('buffer_store_dwordx4 %s, %s, %s, %s offen%s' % (D, vP, sWS, sST, self.o.stflag), 'vst',
                                   [D, vP, sST, 'OKGO'], ['PST%d' % c], due=self.p.nm + 10)
    def out_addr(self):
        t0 = vT[0]
        self.lane(t0)
        self.vops(['v_lshlrev_b32 %s, 4, %s' % (vC, t0), 's_lshl_b32 %s, %s, 10' % (sTMP, sJ), 'v_add_u32 %s, %s, %s' % (vP, sTMP, vC),
                   'v_and_b32 %s, 15, %s' % (vO, t0), 'v_mul_u32_u24 %s, 1792, %s' % (vO, vO), 'v_lshlrev_b32 %s, 2, %s' % (vF, t0),
                   'v_and_b32 %s, 48, %s' % (t0, t0), 'v_add_u32 %s, %s, %s' % (vO, vO, t0)])
        for r in range(5):
            d = sJOB[r]
            txt = ['s_add_u32 {d}, {j}, %d' % (8 * r), 's_mul_i32 {t}, {d}, 52', 's_lshr_b32 {t}, {t}, 8', 's_mul_i32 {u}, {t}, 5',
                   's_sub_u32 {u}, {d}, {u}', 's_lshl_b32 {t}, {t}, 7', 's_cmp_ge_u32 {d}, 35', 's_cselect_b32 {d}, 0x40000000, {ob}',
                   's_add_u32 {d}, {d}, {t}', 's_cmp_ge_u32 {u}, 3', 's_cselect_b32 {t}, 1, 0', 's_cselect_b32 {h}, 3, 0', 's_sub_u32 {u}, {u}, {h}',
                   's_xor_b32 {t}, {t}, {par}', 's_lshl_b32 {t}, {t}, 6', 's_add_u32 {d}, {d}, {t}',
                   's_lshl_b32 {t}, {par}, 1', 's_add_u32 {t}, {t}, {u}', 's_cmp_eq_u32 {u}, 2', 's_cselect_b32 {t}, 4, {t}',
                   's_mul_i32 {t}, {t}, 28672', 's_add_u32 {d}, {d}, {t}']
            txt = [x.format(d=d, j=sJ, t=sTMP, u=sT2, h=sHK, ob=sOB, par=sPAR) for x in txt]
            k = 0
            while k < len(txt):
                n = 1
                if txt[k].startswith('s_cmp'):
                    while k + n < len(txt) and txt[k + n].startswith('s_cselect'): n += 1
                self.salu('\n    '.join(txt[k:k + n]), [d, sTMP, sT2, sHK], [d, sTMP, sT2, sHK]); k += n
    def publish(self, val, chunks, soft, nb=None):
        t = vT[1]
        self.valu('v_mov_b32 %s, %d' % (t, val), [], [t])
        self.vops(['v_lshlrev_b32 %s, 2, %s' % (vT[2], vC), 's_lshl_b32 %s, %s, 2' % (sTCH, sJ), 's_add_u32 %s, %s, %d' % (sTCH, sTCH, PREG)])
        self.p.add('buffer_store_dword %s, %s, %s, %s offen sc1' % (t, vT[2], sWS, sTCH), 'vst', [t, vT[2], sTCH, 'PUB'] + ['PST%d' % c for c in chunks],
                   [], soft=soft, nb=nb, due=nb)
    def poll(self, name, load, dst, check, nb, soft, rd):
        self.p.add(load, 'vld', rd, [dst, 'PUB'], nb=nb, due=nb)
        self.p.add(check + '\n    s_cbranch_scc0 L_spin%s\nL_back%s:' % (name, name), 'br', [dst] + list(rd), [dst, 'vcc', sHK, 'GO' + name], soft=soft,
                   due=None if nb is None else nb + soft)
        self.spins.append((name, load, check))
    def pollflags(self, name, val, nb, soft, rd=()):
        t = vT[0]
        self.salu('s_mov_b32 %s, %d' % (sT2, PREG), [], [sT2])
        self.poll(name, 'buffer_load_dword %s, %s, %s, %s offen sc1' % (t, vF, sWS, sT2), t,
                  'v_cmp_le_u32 vcc, %d, %s\n    s_nop 4\n    s_cmp_eq_u32 vcc_lo, 0xff' % (val, t), nb, soft, [vF, sT2] + list(rd))
    def jobload(self, r, L, go, nb=None, step=0):
        for jj in range(8):
            if jj % 4 == 0:
                so = self.soff()
                self.salu('s_lshl_b32 %s, %s, 13' % (so, sJ), [sJ], [so]); self.salu('s_add_u32 %s, %s, %d' % (so, so, r * 65536 + jj * 1024), [so], [so])
            pos = None if nb is None else nb + jj * step
            self.p.add('buffer_load_dwordx4 %s, %s, %s, %s offen offset:%d sc1' % (L[jj], vC, sWS, so, (jj & 3) * 1024), 'vld', [vC, so, go], [L[jj]], nb=pos, due=pos)
    def jobsum(self, r, L, T):
        A = [reg(T[0], e) for e in range(4)] + [reg(T[1], e) for e in range(4)]
        for jj in range(8):
            for e in range(4):
                src = reg(L[jj], e); t0, t1 = reg(T[2], (2 * e) & 3), reg(T[2], (2 * e + 1) & 3)
                if src[0] == 'a':
                    self.valu('v_accvgpr_read_b32 %s, %s' % (t1, src), [src], [t1]); src = t1
                if jj == 0: self.vops(['v_lshlrev_b32 %s, 16, %s' % (A[2 * e], src), 'v_and_b32 %s, 0xffff0000, %s' % (A[2 * e + 1], src)])
                else: self.vops(['v_lshlrev_b32 %s, 16, %s' % (t0, src), 'v_and_b32 %s, 0xffff0000, %s' % (t1, src),
                                 'v_add_f32 %s, %s, %s' % (A[2 * e], A[2 * e], t0), 'v_add_f32 %s, %s, %s' % (A[2 * e + 1], A[2 * e + 1], t1)])
        for e in range(4): self.vops(['v_cvt_pk_bf16_f32 %s, %s, %s' % (A[e], A[2 * e], A[2 * e + 1])])
        self.p.add('buffer_store_dwordx4 %s, %s, %s, %s offen' % (T[0], vO, sOUT, sJOB[r]), 'vst', [T[0], vO, sJOB[r]], [])
    def build(self):
        o = self.o
        W = [[Tile('wq%d_%d' % (h, k), 'wq', (h, k >> 1, k & 1)) for k in range(8)] for h in range(2)]
        def attn_tiles(h):
            l = [('k', 0)]
            for i in range(1, 8): l += [('k', i), ('v', i - 1)]
            return [Tile('%s%d_%d' % (k, h, i), k, (h, i)) for k, i in l + [('v', 7)]]
        A = [attn_tiles(h) for h in range(2)]
        WO = [Tile('wo%d_%d' % (m, h), 'wo', (h, m)) for m in range(7) for h in range(2)]
        def xt(name, p):
            return (Tile(name + 'A', 'x', [('a', p, 0), ('b', p, 1024), ('s', p, 5248), ('a', p + 1, 4224), ('s', p + 1, 7360)]),
                    Tile(name + 'B', 'x', [('b', p + 1, 0), ('a', p + 2, 1024), ('b', p + 2, 4224), ('s', p + 2, 5248)]))
        XA0, XB0 = xt('x0', 0); XA1, XB1 = xt('x1', 4); XA2, XB2 = xt('x2', 4)
        XE = Tile('xe', 'xe', [('a', 3, 2048), ('b', 3, 3072), ('s', 3, 6144)])
        self.P = [{'a': [PQ[5 * b], PQ[5 * b + 1]], 'b': [PQ[5 * b + 2], PQ[5 * b + 3]], 's': [PQ[5 * b + 4], PX[b]]} for b in range(2)]
        self.qacc = dict(zip([(0, 's'), (0, 'a'), (0, 'b'), (1, 's'), (1, 'a'), (1, 'b'), (2, 'a'), (2, 'b'), (3, 'a'), (3, 'b')], PQ))
        self.oacc = dict(zip([(0, 'a'), (0, 'b'), (0, 's'), (1, 'a'), (1, 'b'), (1, 's'), (2, 'a'), (2, 'b'), (3, 'a'), (3, 'b')], PQ))
        def xmap(lst): return {qt: [lst[3 * ks + k] for ks in range(14)] for k, qt in enumerate('sab')}
        X0 = xmap(ABIG[:18] + BIG[:24]); X1 = xmap(ABIG)
        Q0 = {qt: ABIG[18 + 8 * k: 26 + 8 * k] for k, qt in enumerate('sab')}
        def omap(lst):
            O = {'a': [None] * 16, 'b': [None] * 16, 's': [None] * 16}; k = 0
            for u in range(8):
                for qt in (('s', 'a', 'b') if u % 2 == 0 else ('a', 'b')):
                    O[qt][2 * u] = lst[k]; O[qt][2 * u + 1] = lst[k + 1]; k += 2
            return O
        O0 = omap(BIG); O1 = omap(ABIG[:40])
        OB0 = {qt: [O0[qt][2 * u] for u in range(8)] for qt in 'sab'}
        Q1 = {qt: [O0[qt][2 * u + 1] for u in range(8)] for qt in 'sab'}
        for u in range(1, 8, 2): OB0['s'][u] = OPART0[u >> 1]; Q1['s'][u] = QPART1[u >> 1]
        OB1 = Q1
        self.maps = dict(Q0=Q0, Q1=Q1)
        QB = [2, 26]
        self.touch_plan = {}
        for h in range(2):
            for (at, tile) in o.touch:
                self.touch_plan.setdefault(QB[h] + int(at // 1), []).append((A[h][tile], int((at % 1) * 70) + 5))
        if o.wtouch & 2:
            self.touch_plan.setdefault(QB[1] - 4, []).append((('wq', (1, 0, 2)), 68))
        if o.wtouch & 4:
            for k, (at, dg) in enumerate(((-4, 68), (0, 10), (4, 10))):
                self.touch_plan.setdefault(QB[1] + 24 + at, []).append((('wo', (1 + 2 * k, 1)), dg))
        if o.wtouch & 1:
            self.ctouch('x', (0, 3), None, 'PRE'); self.ctouch('wq', (0, 0, o.wt0), None, 'PRE')
        for t, s in ((XA0, 0), (XB0, 2), (W[0][0], 1), (XE, None), (XA1, 3)):
            t.slot = s; self.dma(t, 'PRE', -100, 0)
        if (o.wtouch & 1) and o.wt0 < 2: self.ctouch('wq', (0, 1 << o.wt0, 2), None, 'PRE')
        self.x_addr()
        self.setfr(FR + SQ + PX)
        self.bar(ready=[XA0, XB0, W[0][0]])
        self.xread(XA0, X0); self.xread(XB0, X0)
        self.bar(free=[XA0, XB0], issue=[(W[0][1], 0), (XB1, 2)], span=24, lead=0, waitregs=ABIG[:18])
        def mid0():
            self.bar(ready=[XE, XA1]); self.xread(XE, X0); self.xread(XA1, X0)
        self.qtile(W[0][0], X0, Q0, {2: mid0})
        self.bar(ready=[W[0][1], XB1], free=[W[0][0], XA1], issue=[(W[0][2], 1), (W[0][3], 3)], span=40)
        self.xread(XB1, X0)
        self.qtile(W[0][1], X0, Q0)
        self.bar(ready=[W[0][2]], free=[W[0][1], XB1], issue=[(W[0][4], 0), (W[0][5], 2)], span=50)
        self.k_addr()
        self.vops(['v_mov_b32 %s, 0' % vT[1], 'v_bfe_u32 %s, %s, 4, 6' % (vT[2], vLIN), 'v_lshlrev_b32 %s, 6, %s' % (vT[2], vT[2]),
                   's_lshl_b32 %s, %s, 2' % (sTCH, sJ), 's_add_u32 %s, %s, %d' % (sTCH, sTCH, PREG)])
        self.p.add('buffer_store_dword %s, %s, %s, %s offen sc1' % (vT[1], vT[2], sWS, sTCH), 'vst', [vT[1], vT[2], sTCH], ['FLAG0'], due=self.p.nm + 30)
        self.bar_ex.setdefault(QB[0] + 10, []).append('FLAG0')
        def announce(b):
            self.valu('v_mov_b32 %s, 1' % vT[1], [], [vT[1]])
            self.p.add('buffer_store_byte %s, %s, %s, %s offen sc1' % (vT[1], vTOUCH, sDBG, sJ), 'vst', [vT[1], vTOUCH, sJ, b], [], due=self.p.nm + 40)
        self.after_bar.setdefault(QB[0] + 10, []).append(announce)
        self.qtile(W[0][2], X0, Q0)
        def stream(seq, k):
            self.bar(ready=[seq[k]], free=[seq[k - 1]], issue=[(seq[k + 3], seq[k - 1].slot)] if k + 3 < len(seq) else [])
        def attention(h, seq, k0, Q, O, OB, tmp, tail):
            stream(seq, k0)
            self.setfr(FR)
            self.hookop(h, Q, tmp)
            self.stamp()
            self.qk(0, seq[k0], Q, self.nbar)
            k = k0 + 1
            for i in range(1, 8):
                stream(seq, k); self.qk(i, seq[k], Q, self.nbar + (1 if i < 7 else 0)); k += 1
                stream(seq, k)
                if i == 7:
                    self.lfinish(h, 'B%d' % (self.nbar - 1)); tail(0)
                self.pv(i - 1, seq[k], O, OB); k += 1
            tail(1)
            self.pv(7, seq[k], O, OB)
            self.stamp()
        seq0 = W[0] + A[0] + [XA2, XB2]
        for k in range(3, 8):
            stream(seq0, k); self.qtile(W[0][k], X0, Q0)
        V6, V7 = A[0][14], A[0][15]
        def tail0(st):
            if st == 0:
                self.x_addr(); self.xread(XE, X1)
            else:
                self.bar(ready=[V7, XA2], free=[V6, XE], issue=[(W[1][0], V6.slot)], span=30); self.xread(XA2, X1)
        self.osdelay = 2
        attention(0, seq0, 8, Q0, O0, OB0, BIG[:8], tail0)
        self.setfr(FR + SQ + PX)
        self.bar(ready=[W[1][0], XB2], free=[V7, XA2], issue=[(W[1][1], XA2.slot), (W[1][2], V7.slot)], span=40)
        self.xread(XB2, X1)
        self.qtile(W[1][0], X1, Q1)
        self.bar(ready=[W[1][1]], free=[W[1][0], XB2], issue=[(W[1][3], W[1][0].slot), (W[1][4], XB2.slot)], span=60)
        self.k_addr()
        self.qtile(W[1][1], X1, Q1)
        seq1 = W[1] + A[1] + WO
        for k in range(2, 8):
            stream(seq1, k); self.qtile(W[1][k], X1, Q1)
        def tail1(st):
            if st == 0: self.out_addr()
            else: stream(seq1, 23)
        self.osdelay = 1
        attention(1, seq1, 8, Q1, O1, OB1, ABIG[:8], tail1)
        self.setfr(FR + SQ + PX)
        LA = [ABIG[8 * r: 8 * r + 8] for r in range(3)]
        for k in range(14):
            stream(seq1, 24 + k)
            g = self.p.nm
            if k == 3:
                d = half(NEGM['a'], 0)
                self.poll('R', 'buffer_load_dwordx2 %s, off, %s, 0 sc1' % (d, sDBG), d,
                          'v_and_b32 %s, %s, %s\n    v_cmp_eq_u32 vcc, 0x01010101, %s\n    s_nop 4\n    s_cmp_eq_u32 vcc_lo, -1' % (reg(d, 0), reg(d, 0), reg(d, 1), reg(d, 0)),
                          g + 10, 100, [])
            if k == 10: self.publish(1, range(24), o.pub_soft, g + o.pub_at)
            if k == 12:
                self.pollflags('A', 1, g + o.poll_at, o.poll_soft, ['GOR'])
                for r in range(3): self.jobload(r, LA[r], 'GOA', g + o.poll_at + o.poll_soft + 2 + 32 * r, 4)
            self.otile(WO[k], [OB0, OB1])
        self.stamp()
        T3 = list(NEGM.values())
        self.jobsum(0, LA[0], T3)
        self.publish(2, range(24, 35), 0)
        self.jobsum(1, LA[1], BIG[0:3]); self.jobsum(2, LA[2], BIG[3:6])
        self.pollflags('B', 2, None, 0)
        self.jobload(3, BIG[8:16], 'GOB'); self.jobload(4, BIG[16:24], 'GOB')
        self.jobsum(3, BIG[8:16], BIG[24:27]); self.jobsum(4, BIG[16:24], BIG[27:30])
        assert not self.bar_ex and not self.after_bar and not self.touch_plan, (self.bar_ex, self.after_bar.keys(), self.touch_plan.keys())
        return self.p.schedule()
    def hook(self, h):
        Q = self.maps['Q%d' % h]; F = BIG[:8] if h == 0 else ABIG[:8]
        a = Asm(); t0, t1, t2 = vT
        a.label('L_hook%d' % h)
        a('v_bfe_u32 %s, %s, 4, 6' % (t2, vLIN))
        a('v_and_b32 %s, 15, %s\nv_lshlrev_b32 %s, 9, %s' % (t0, t2, t0, t0))
        a('v_and_b32 %s, 48, %s\nv_add_u32 %s, %s, %s' % (t2, t2, t0, t0, t2))
        a('s_lshl_b32 %s, %s, 6' % (sTMP, sPAR))
        a('v_add_u32 %s, %s, %s\nv_xor_b32 %s, 64, %s' % (t0, sTMP, t0, t1, t0))
        for qt in 'sab': a('v_mov_b32 %s, 0xff800000' % vL[qt])
        a('s_mov_b32 %s, %d' % (sHK, h * 262144))
        a.label('L_hookloop%d' % h)
        for t in range(8): a('buffer_load_dwordx4 %s, %s, %s, %s offen offset:%d' % (F[t], (t0, t1)[t & 1], sK, sHK, 128 * (t >> 1)))
        a('s_waitcnt vmcnt(0)')
        for k, qt in enumerate('sab'):
            for t in range(8): a('v_mfma_f32_16x16x32_bf16 %s, %s, %s, %s' % (SQ[k], F[t], Q[qt][t], '0' if t == 0 else SQ[k]))
        a('s_nop 7\ns_nop 1')
        for k, qt in enumerate('sab'):
            a('v_max3_f32 %s, %s, %s, %s' % (vL[qt], vL[qt], reg(SQ[k], 0), reg(SQ[k], 1)))
            a('v_max3_f32 %s, %s, %s, %s' % (vL[qt], vL[qt], reg(SQ[k], 2), reg(SQ[k], 3)))
        a('s_add_u32 %s, %s, 8192\ns_cmp_lt_u32 %s, %d\ns_cbranch_scc1 L_hookloop%d' % (sHK, sHK, sHK, (h + 1) * 262144, h))
        for qt in 'sab':
            for sw in ('32', '16'):
                a('v_mov_b32 %s, %s\ns_nop 1\nv_permlane%s_swap_b32 %s, %s\ns_nop 1\nv_max_f32 %s, %s, %s' % (t2, vL[qt], sw, vL[qt], t2, vL[qt], vL[qt], t2))
            for e in range(4): a('v_sub_f32 %s, 0, %s' % (reg(NEGM[qt], e), vL[qt]))
        a('s_nop 2\ns_branch L_ret%d' % h)
        return a.text()
    def spincode(self):
        a = Asm()
        for name, load, check in self.spins:
            a.label('L_spin' + name)
            a('s_mov_b32 %s, 0x40000' % sHK)
            a.label('L_spinloop' + name)
            a(load); a('s_waitcnt vmcnt(0)'); a(check)
            a('s_cbranch_scc1 L_back%s\ns_sub_u32 %s, %s, 1\ns_cmp_lg_u32 %s, 0\ns_cbranch_scc1 L_spinloop%s\ns_branch L_back%s' % (name, sHK, sHK, sHK, name, name))
        return a.text()

def prologue(o):
    a = Asm()
    a("""
    s_cmp_ge_u32 s2, 256
    s_cbranch_scc1 L_end
    EARLY_TOUCH
    s_and_b32 s61, s2, 7
    s_lshr_b32 s62, s2, 3
    s_lshr_b32 s63, s61, 2
    s_mul_i32 s50, s63, 40
    s_add_u32 s56, s0, s50
    s_addc_u32 s57, s1, 0
    s_load_dwordx2 s[8:9], s[56:57], 0
    s_load_dwordx2 s[20:21], s[56:57], 24
    s_load_dwordx2 s[12:13], s[56:57], 8
    s_load_dwordx2 s[16:17], s[56:57], 16
    s_load_dwordx2 s[24:25], s[56:57], 32
    s_load_dwordx2 s[28:29], s[0:1], 96
    s_load_dwordx2 s[4:5], s[0:1], 80
    s_load_dwordx2 s[96:97], s[0:1], 88
    """)
    if o.stamps == 1: a('s_memrealtime s[64:65]\ns_memtime s[66:67]')
    if o.stamps == 2: a('s_memtime s[64:65]')
    if o.map == 'B': a('s_and_b32 s38, s61, 3\ns_lshl_b32 s38, s38, 1\ns_and_b32 s50, s62, 1\ns_add_u32 s38, s38, s50\ns_lshr_b32 s60, s62, 1')
    if o.map == 'C': a('s_and_b32 s38, s61, 1\ns_lshl_b32 s38, s38, 2\ns_and_b32 s50, s62, 3\ns_add_u32 s38, s38, s50\ns_and_b32 s60, s61, 2\ns_lshl_b32 s60, s60, 2\ns_lshr_b32 s50, s62, 2\ns_add_u32 s60, s60, s50')
    if o.map == 'A': a('s_and_b32 s38, s62, 7\ns_and_b32 s60, s61, 3\ns_lshl_b32 s60, s60, 2\ns_lshr_b32 s50, s62, 3\ns_add_u32 s60, s60, s50')
    nx, nw = {'A': (8, 4), 'B': (2, 16), 'C': (4, 8)}[o.map]
    a('s_and_b32 s61, s38, %d\ns_and_b32 s62, s60, %d' % (nx - 1, nw - 1))
    a("""
    v_lshrrev_b32 v21, 6, v0
    v_lshlrev_b32 v15, 7, v0
    v_readfirstlane_b32 s32, v21
    v_and_b32 v21, 63, v0
    s_mov_b32 s43, 0
    s_mov_b32 s10, 143360
    s_mov_b32 s11, 0x20000
    s_mov_b32 s14, 524288
    s_mov_b32 s15, 0x20000
    s_mov_b32 s18, 524288
    s_mov_b32 s19, 0x20000
    s_mov_b32 s23, 0x20000
    s_mov_b32 s26, 458752
    s_mov_b32 s27, 0x20000
    s_mov_b32 s31, 0x20000
    s_mov_b32 s6, 4587520
    s_mov_b32 s7, 0x20000
    s_mov_b32 s98, 16
    s_mov_b32 s99, 0x20000
    s_and_b32 s33, s32, 1
    s_mul_i32 s34, s32, 8448
    s_lshr_b32 s59, s32, 1
    s_lshl_b32 s35, s32, 10
    s_lshl_b32 s50, s33, 3
    s_add_u32 s35, s35, s50
    s_lshl_b32 s50, s59, 6
    s_add_u32 s35, s35, s50
    s_lshl_b32 s50, s33, 6
    s_add_u32 s39, s34, s50
    s_mul_i32 s37, s59, 71680
    s_mul_i32 s36, s33, 28672
    s_add_u32 s36, s36, s37
    s_mul_i32 s50, s33, 7168
    s_add_u32 s37, s37, s50
    s_add_u32 s37, s37, 57344
    s_lshl_b32 s50, s32, 13
    v_lshl_add_u32 v12, v21, 4, s50
    v_lshrrev_b32 v22, 3, v21
    v_mul_u32_u24 v14, 896, v22
    v_lshrrev_b32 v22, 4, v21
    v_and_b32 v23, 7, v21
    v_xor_b32 v22, v22, v23
    v_lshl_add_u32 v14, v22, 4, v14
    """)
    a('s_mov_b32 s30, %d\ns_mul_i32 s3, s32, %d\ns_add_u32 s3, s3, %d' % (PREG + 32, EXW, EX))
    a('s_mov_b32 %s, 0x%x\ns_mov_b32 %s, 0x%x\ns_mov_b32 %s, 0x%x' % (sSCALE, SCALE, sLO, (127 - 30) << 23, sHI, (127 + 30) << 23))
    a("""
    s_mul_i32 s100, s60, 10
    s_mul_i32 s50, s59, 5
    s_add_u32 s100, s100, s50
    s_mul_i32 s100, s100, 28672
    s_mul_i32 s50, s63, 896
    s_add_u32 s100, s100, s50
    s_waitcnt lgkmcnt(0)
    s_mul_i32 s50, s60, 143360
    s_add_u32 s8, s8, s50
    s_addc_u32 s9, s9, 0
    s_lshl_b32 s50, s38, 10
    s_add_u32 s20, s20, s50
    s_addc_u32 s21, s21, 0
    s_sub_u32 s22, 3670016, s50
    s_lshl_b32 s58, s60, 3
    s_add_u32 s58, s58, s38
    KVOFF
    s_add_u32 s12, s12, s50
    s_addc_u32 s13, s13, 0
    s_add_u32 s16, s16, s50
    s_addc_u32 s17, s17, 0
    s_mul_i32 s50, s38, 458752
    s_add_u32 s24, s24, s50
    s_addc_u32 s25, s25, 0
    s_lshl_b32 s58, s63, 4
    s_add_u32 s58, s58, s60
    s_lshl_b32 s50, s58, 3
    s_add_u32 s96, s96, s50
    s_addc_u32 s97, s97, 0
    s_lshl_b32 s58, s58, 2
    s_add_u32 s58, s58, s32
    """)
    a('s_mul_i32 s50, s58, %d\ns_add_u32 s28, s28, s50\ns_addc_u32 s29, s29, 0' % PSTRIDE)
    a.label('L_start')
    a("""
    s_mov_b64 s[46:47], 0
    v_bfe_u32 v21, v12, 4, 6
    v_bfe_u32 v13, v21, 5, 1
    v_lshlrev_b32 v13, 4, v13
    v_bfe_u32 v23, v21, 4, 1
    v_lshl_add_u32 v13, v23, 2, v13
    v_bfe_u32 v23, v21, 3, 1
    v_add_u32 v13, v13, v23
    s_lshr_b32 s101, s32, 1
    s_lshl_b32 s101, s101, 3
    s_lshl_b32 s50, s33, 1
    s_add_u32 s101, s101, s50
    v_add_u32 v13, s101, v13
    v_lshlrev_b32 v13, 13, v13
    v_and_b32 v23, 7, v21
    v_lshl_add_u32 v13, v23, 4, v13
    """)
    t = a.text()
    et = 's_getpc_b64 s[54:55]\n    v_lshrrev_b32 v15, 1, v0\n    v_lshlrev_b32 v15, 7, v15\n    global_load_dword a252, v15, s[54:55]' if o.early else ''
    t = t.replace('EARLY_TOUCH', et).replace('KVOFF', 's_mov_b32 s50, 0' if o.fakekv else 's_lshl_b32 s50, s58, 19')
    if o.rot: t = t.replace('L_start:', '    s_lshr_b32 s63, s2, 3\n    s_mul_i32 s63, s63, %d\n    s_lshl_b32 s63, s63, 15\nL_start:' % o.rot)
    if o.pstamp:
        t = t.replace('    s_waitcnt lgkmcnt(0)\n    s_mul_i32 s50, s60, 143360', '    s_memtime s[66:67]\n    s_waitcnt lgkmcnt(0)\n    s_memtime s[68:69]\n    s_mul_i32 s50, s60, 143360')
        t += '    s_memtime s[70:71]\n'
    return t

def prologue2():
    return ["v_bfe_u32 v21, v12, 4, 6",
            "v_lshrrev_b32 v23, 2, v21", "v_mul_u32_u24 v4, 1056, v23", "v_and_b32 v22, 3, v21", "v_lshl_add_u32 v4, v22, 3, v4",
            "s_mul_i32 s101, s33, 16960", "s_mul_i32 s50, s33, 16832", "s_add_u32 s50, s50, 64", "v_add_u32 v5, s50, v4",
            "s_sub_u32 s50, 16960, s50", "v_add_u32 v6, s50, v4", "s_sub_u32 s50, 16960, s101", "v_add_u32 v7, s50, v4", "v_add_u32 v4, s101, v4",
            "v_bfe_u32 v23, v21, 3, 1", "v_mul_u32_u24 v8, 1032, v23", "v_bfe_u32 v23, v21, 4, 1", "v_mul_u32_u24 v23, 2112, v23", "v_add_u32 v8, v8, v23",
            "v_bfe_u32 v23, v21, 2, 1", "v_lshl_add_u32 v8, v23, 7, v8", "v_bfe_u32 v23, v21, 5, 1", "v_lshl_add_u32 v8, v23, 9, v8",
            "v_lshl_add_u32 v8, v22, 4, v8", "s_lshl_b32 s101, s33, 6", "s_sub_u32 s50, 64, s101", "v_add_u32 v9, s50, v8", "v_add_u32 v8, s101, v8",
            "v_lshl_add_u32 v16, v21, 4, s3", "s_xor_b32 s50, s32, 1", "s_mul_i32 s50, s50, %d" % EXW, "s_add_u32 s50, s50, %d" % EX,
            "v_lshl_add_u32 v17, v21, 4, s50"] + ["v_mov_b32 v%d, 0" % i for i in range(24, 36)]

def main(argv):
    ap = argparse.ArgumentParser()
    ap.add_argument('-o', default='k.s')
    ap.add_argument('--map', default='B')
    ap.add_argument('--stamps', type=int, default=0)
    ap.add_argument('--stiles', default='0:60:4')
    ap.add_argument('--lat_lds', type=float, default=7)
    ap.add_argument('--lat_vm', type=float, default=40)
    ap.add_argument('--late', type=float, default=1)
    ap.add_argument('--dma_span', type=float, default=60)
    ap.add_argument('--dma_lead', type=float, default=0)
    ap.add_argument('--kvflag', default=' nt')
    ap.add_argument('--wflag', default='')
    ap.add_argument('--xflag', default='')
    ap.add_argument('--codetouch', type=int, default=3)
    ap.add_argument('--ct_lead', type=int, default=6144)
    ap.add_argument('--wtouch', type=int, default=6)
    ap.add_argument('--touch', default='')
    ap.add_argument('--pub_at', type=int, default=70)
    ap.add_argument('--pub_soft', type=int, default=50)
    ap.add_argument('--poll_at', type=int, default=-10)
    ap.add_argument('--poll_soft', type=int, default=50)
    ap.add_argument('-v', action='store_true')
    ap.add_argument('--fakekv', type=int, default=0)
    ap.add_argument('--rot', type=int, default=0)
    ap.add_argument('--wt_lead', type=int, default=6)
    ap.add_argument('--wt0', type=int, default=2)
    ap.add_argument('--early', type=int, default=1)
    ap.add_argument('--pstamp', type=int, default=0)
    ap.add_argument('--stflag', default='sc1')
    o = ap.parse_args(argv)
    for k in ('kvflag', 'wflag', 'xflag', 'stflag'):
        v = getattr(o, k).strip().replace('+', ' ')
        setattr(o, k, (' ' + v) if v and v != 'none' else '')
    o.touch = [(float(x.split(':')[0]), int(x.split(':')[1])) for x in o.touch.split(',') if x]
    o.stiles = list(range(*map(int, o.stiles.split(':'))))[:14]
    g = Gen(o)
    if o.pstamp: g.nstamp = 4; o.stiles = o.stiles[:10]
    xa = g.x_addr
    def first_x():
        if o.pstamp: g.salu('s_memtime s[72:73]', ['PRE', 'm0'], ['STAMP'])
        g.vops(prologue2()); g.x_addr = xa; xa()
    g.x_addr = first_x
    out = g.build()
    body = prologue(o)
    body += ''.join('    ' + t + '\n' for t, k in out)
    a = Asm()
    if o.stamps:
        w = 4 if o.stamps == 1 else 2
        k = STAMP0 + w + w * g.nstamp; ns = g.nstamp + 2
        a('s_waitcnt vmcnt(0)')
        a('s_memrealtime s[%d:%d]\ns_memtime s[%d:%d]' % (k, k + 1, k + 2, k + 3) if w == 4 else 's_memtime s[%d:%d]' % (k, k + 1))
        a('s_load_dwordx2 s[40:41], s[0:1], 96\ns_waitcnt lgkmcnt(0)\ns_cmp_lg_u32 s32, 0\ns_cbranch_scc1 L_end')
        a('s_mul_i32 s50, s2, %d\ns_add_u32 s50, s50, 280000000\nv_mov_b32 v8, s50' % (ns * 16))
        for s in range(ns):
            for j in range(4): a('v_mov_b32 v%d, s%d' % (4 + j, STAMP0 + w * s + (j % w)))
            a('global_store_dwordx4 v8, v[4:7], s[40:41] offset:%d\ns_nop 3' % (16 * s))
        print('stamps: use --stamps %d' % (2 * ns))
    a('L_end:\ns_endpgm')
    a('L_restart:\ns_waitcnt vmcnt(0) lgkmcnt(0)\ns_barrier\ns_mov_b32 %s, -1\ns_branch L_start' % sMODE)
    body += a.text() + g.spincode() + g.hook(0) + g.hook(1) + '    .fill 8192, 4, 0xBF800000\n'
    txt = build([dict(name=NAME + '_kernel', grid=256, block=256, lds=LDS_BYTES, body=body, vgpr=512, sgpr=102, accum=256)])
    open(o.o, 'w').write(txt)
    tot, costs = estimate(out)
    nm = g.p.nm
    print('mfma %d  est cycles %d (ideal %d)  forced ops %d  instrs %d  bytes %d' % (nm, tot, nm * 16, g.p.stats['forced'], len(out), len(txt)))
    bounds = [0, 560, 1840, 2400, 3680, 4800]
    print('phase overhead:', [sum(c - 16 for i, c in costs if lo <= i < hi) for lo, hi in zip(bounds, bounds[1:])])
    if o.v:
        print('forced:', g.p.stats['forced_gaps'])
        print('over:', [(i, c) for i, c in costs if c > 16])

if __name__ == '__main__':
    main(sys.argv[1:])
```

```python
import sys, argparse, struct
from asmlib import *
from sched import Prog, estimate

SLOT = 33792; PAIR = 2 * SLOT
EX = 4 * SLOT; EXW = 7168
LDS_BYTES = 163840
SCALE = struct.unpack('<I', struct.pack('<f', 1.4426950408889634 / 16.0))[0]
PREG = 35 * 8192
PSTRIDE = PREG + 1024

def q(f, n): return '%s[%d:%d]' % (f, 4 * n, 4 * n + 3)
def VQ(n): return q('v', n)
def AQ(n): return q('a', n)
def reg(quad, i):
    f = quad[0]; lo = int(quad[2:-1].split(':')[0]); return '%s%d' % (f, lo + i)
def half(quad, h):
    f = quad[0]; lo = int(quad[2:-1].split(':')[0]) + 2 * h; return '%s[%d:%d]' % (f, lo, lo + 1)

aK = [['v0', 'v1'], ['v2', 'v3']]; aV = [['v4', 'v5'], ['v6', 'v7']]; aW = [['v8', 'v9'], ['v10', 'v11']]
aXab, aXs, aEab, aEs = 'v0', 'v1', 'v2', 'v3'
vP, vC, vO, vF = 'v0', 'v1', 'v2', 'v3'
vLIN, vWROW, vX, vTOUCH, aEXw, aEXr = 'v12', 'v13', 'v14', 'v15', 'v16', 'v17'
vL = {'a': 'v18', 'b': 'v19', 's': 'v20'}
vT = ['v21', 'v22', 'v23']
NEGM = {'a': VQ(6), 'b': VQ(7), 's': VQ(8)}
SQ = [VQ(9 + i) for i in range(5)]
PQ = [VQ(14 + i) for i in range(10)]
BIG = [VQ(24 + i) for i in range(40)]
FR = [AQ(i) for i in range(10)]
PX = [AQ(10), AQ(11)]
OPART0 = [AQ(12 + i) for i in range(4)]
QPART1 = [AQ(16 + i) for i in range(4)]
ABIG = [AQ(20 + i) for i in range(42)]
aTOUCH = 'a252'
sX, sK, sV, sWQ, sWO, sWS = 's[8:11]', 's[12:15]', 's[16:19]', 's[20:23]', 's[24:27]', 's[28:31]'
sW, sPAR, sW8448, sWPAD = 's32', 's33', 's34', 's35'
sXA, sXS, sJ = 's36', 's37', 's38'
sSOFF = ['s40', 's41']; sSCALE, sMODE, sLO, sHI = 's42', 's43', 's44', 's45'
sBAD = 's[46:47]'; sCMP = 's[48:49]'; sTMP = 's50'; sST = 's51'; sTCH = 's52'; sHK = 's53'
sPC = 's[54:55]'
sOUT, sDBG = 's[4:7]', 's[96:99]'
sXSM, sEXM = 's39', 's3'
sOB = 's100'; sT2 = 's101'; sSHX, sSHW = 's61', 's62'
sJOB = ['s56', 's57', 's58', 's59', 's60']
STAMP0 = 64

class Tile:
    def __init__(self, name, kind, arg): self.name, self.kind, self.arg = name, kind, arg; self.slot = None; self.nd = 0
    @property
    def tok(self): return 'T_' + self.name

class Gen:
    def __init__(self, o):
        self.o = o
        self.p = Prog(lat_lds=o.lat_lds, lat_vm=o.lat_vm, late=o.late)
        self.pair = {}
        self.frl = FR; self.fri = 0
        self.si = 0; self.soi = 0; self.exi = 0; self.exq = 0; self.tq = 0
        self.nbar = 0
        self.bar_ex = {}
        self.after_bar = {}
        self.nstamp = 0
        self.spins = []
    def valu(self, t, rd, wr, **k): return self.p.add(t, 'valu', rd, wr, **k)
    def salu(self, t, rd, wr, **k): return self.p.add(t, 'salu', rd, wr, **k)
    def vops(self, lines):
        for l in lines:
            ops = [x.strip() for x in l.split(None, 1)[1].split(',')]
            rd = [x for x in ops[1:] if x[0] in 'vs' and x[1:].isdigit()]
            (self.salu if l.startswith('s_') else self.valu)(l, rd, [ops[0]])
    def mfma(self, d, a, b, c, extra=()):
        self.p.add('v_mfma_f32_16x16x32_bf16 %s, %s, %s, %s' % (d, a, b, c), 'mfma', [a, b] + list(extra), [d], srcc=([] if c == '0' else [c]))
    def frag(self):
        f = self.frl[self.fri % len(self.frl)]; self.fri += 1; return f
    def setfr(self, l):
        self.frl = l; self.fri = 0
    def base(self, r, t):
        pr = t.slot >> 1
        if self.pair.get(r, 0) != pr:
            self.valu(('v_add_u32 %s, %d, %s' if pr else 'v_subrev_u32 %s, %d, %s') % (r, PAIR, r), [r], [r])
            self.pair[r] = pr
        return (t.slot & 1) * SLOT
    def tstamp(self, n):
        o = self.o
        if o.stamps != 2 or n not in o.stiles: return ''
        k = STAMP0 + 2 + 2 * self.nstamp; self.nstamp += 1
        return '\n    s_memtime s[%d:%d]' % (k, k + 1)
    def stamp(self):
        if self.o.stamps != 1: return
        k = STAMP0 + 4 + 4 * self.nstamp; self.nstamp += 1
        self.salu('s_memrealtime s[%d:%d]\n    s_memtime s[%d:%d]' % (k, k + 1, k + 2, k + 3), [], ['STAMP'], nb=self.p.nm, due=self.p.nm)
    def soff(self):
        so = sSOFF[self.soi & 1]; self.soi += 1; return so
    def kvoff(self, h, i, extra):
        if not self.o.rot: return ('s_mov_b32 %s, ' + str(h * 262144 + i * 32768 + extra), [])
        t = 's_add_u32 %%s, s63, %d|s_and_b32 %%s, %%s, 0x3ffff' % (i * 32768 + extra)
        if h: t += '|s_bitset1_b32 %s, 18'
        return (t, ['s63'])
    def dma(self, t, tok, g0, span):
        o = self.o; kind = t.kind
        slot = t.slot * SLOT if t.slot is not None else None
        items = []
        if kind in ('k', 'v'):
            h, i = t.arg
            for j in range(8):
                items.append((self.kvoff(h, i, (j >> 2) * 4096) if j % 4 == 0 else None,
                              (sW8448, slot + 32 * j + 4096 * (j >> 2)), vLIN, sK if kind == 'k' else sV, (j & 3) * 1024, o.kvflag))
        elif kind == 'wq':
            h, m, hf = t.arg
            for j in range(8 if hf else 6):
                items.append((('s_mov_b32 %s, ' + str((192 * hf + 32 * j) * 8192 + h * 512 + m * 128), []), (sWPAD, slot + 4224 * j), vWROW, sWQ, 0, o.wflag))
        elif kind == 'wo':
            h, m = t.arg
            for j in range(8):
                items.append((('s_mov_b32 %s, ' + str((h * 256 + 32 * j) * 896 + m * 128), []), (sWPAD, slot + 4224 * j), vWROW, sWO, 0, o.wflag))
        else:
            for (qt, p, pos) in t.arg:
                if kind == 'x': ab, sm, hs, b0 = sW8448, sXSM, 2112, slot
                else: ab, sm, hs, b0 = sEXM, sEXM, 2048, 0
                if qt == 's': items.append((('s_add_u32 %%s, %s, %d' % (sXS, 128 * p), [sXS]), (sm, b0 + pos), vX, sX, 0, o.xflag))
                else:
                    for hf in range(2):
                        items.append((('s_add_u32 %%s, %s, %d' % (sXA, 128 * p + 7168 * hf + (14336 if qt == 'b' else 0)), [sXA]),
                                      (ab, b0 + pos + hs * hf), vX, sX, 0, o.xflag))
        t.nd = len(items); so = None
        for j, (ss, (mb, mo), vo, srd, imm, fl) in enumerate(items):
            if ss is not None:
                so = self.soff()
                for l in ss[0].split('|'): self.salu(l.replace('%s', so), ss[1] + [so], [so])
            self.salu('s_add_u32 m0, %s, %d' % (mb, mo), [mb], ['m0'])
            self.p.add('buffer_load_dwordx4 %s, %s, %s offen offset:%d%s lds' % (vo, srd, so, imm, fl), 'dma', [vo, so, 'm0', tok],
                       ['D_%s_%d' % (t.name, j)], due=g0 + (j + 1) * span / len(items), mind={tok: (6 if tok != 'PRE' else 0)})
    def touch(self, t, nb, tok=None):
        extra = [tok] if tok else []
        if t.kind in ('k', 'v'):
            h, i = t.arg
            for l in self.kvoff(h, i, 0)[0].split('|'): self.salu(l.replace('%s', sTCH), [sTCH], [sTCH])
            vo, srd, fl = vTOUCH, sK if t.kind == 'k' else sV, self.o.kvflag
        else:
            h, m, hf = t.arg
            vo = vT[2]
            self.valu('v_lshlrev_b32 %s, 6, %s' % (vo, vTOUCH), [vTOUCH], [vo])
            self.salu('s_mov_b32 %s, %d' % (sTCH, 192 * hf * 8192 + h * 512 + m * 128), [], [sTCH])
            srd, fl = sWQ, self.o.wflag
        self.p.add('buffer_load_dword %s, %s, %s, %s offen%s' % (aTOUCH, vo, srd, sTCH, fl), 'vld', [vo, sTCH] + extra, [], nb=nb, due=nb)
    def ctouch(self, kind, arg, nb, tok=None):
        o = self.o; nx, nw = {'A': (8, 4), 'B': (2, 16), 'C': (4, 8)}[o.map]
        t0, t1 = vT[1], vT[2]
        if kind == 'x':
            p0, lg = arg; rows = 160 // nx; stride = 896; srd = sX; fl = o.xflag; sh = sSHX; col0 = 128 * p0; ncol = min(1 << lg, 7 - p0); base = 0
        elif kind == 'wq':
            h, m0, lg = arg; rows = 448 // nw; stride = 8192; srd = sWQ; fl = o.wflag; sh = sSHW; col0 = 512 * h + 128 * m0; ncol = min(1 << lg, 4 - m0); base = 0
        else:
            m0, lg = arg; rows = 512 // nw; stride = 896; srd = sWO; fl = o.wflag; sh = sSHW; col0 = 128 * m0; ncol = min(1 << lg, 7 - m0); base = 0
        for r0 in range(0, rows, 256 >> lg):
            n = min(rows - r0, 256 >> lg)
            self.vops(['v_lshrrev_b32 %s, %d, %s' % (t0, 7 + lg, vTOUCH), 'v_bfe_u32 %s, %s, 7, %d' % (t1, vTOUCH, lg)])
            self.valu('v_cmp_gt_u32 vcc, %d, %s' % (n, t0), [t0], ['vcc'])
            self.vops(['v_mul_u32_u24 %s, %d, %s' % (t0, stride, t0), 'v_lshl_add_u32 %s, %s, 7, %s' % (t0, t1, t0)])
            self.valu('v_cndmask_b32 %s, 2.0, %s, vcc' % (t0, t0), [t0, 'vcc'], [t0])
            if ncol < (1 << lg):
                self.valu('v_cmp_gt_u32 vcc, %d, %s' % (ncol, t1), [t1], ['vcc'])
                self.valu('v_cndmask_b32 %s, 2.0, %s, vcc' % (t0, t0), [t0, 'vcc'], [t0])
            self.vops(['s_mul_i32 %s, %s, %d' % (sTCH, sh, rows * stride), 's_add_u32 %s, %s, %d' % (sTCH, sTCH, base + r0 * stride + col0)])
            self.p.add('buffer_load_dword %s, %s, %s, %s offen%s' % (aTOUCH, t0, srd, sTCH, fl), 'vld', [t0, sTCH] + ([tok] if tok else []), [], nb=nb, due=nb)
            if nb is not None: nb += 40
    def bar(self, ready=(), free=(), issue=(), span=None, lead=None, waitregs=()):
        n = self.nbar; self.nbar += 1
        rd = ['D_%s_%d' % (t.name, j) for t in ready for j in range(t.nd)] + self.bar_ex.pop(n, []) + list(waitregs)
        wr = ['B%d' % n, 'B%d' % (n - 1)] + [t.tok for t in list(ready) + list(free)] + (['PRE'] if n == 0 else [])
        self.p.add('s_barrier' + self.tstamp(n), 'bar', rd, wr, soft=3)
        g = self.p.nm
        span = self.o.dma_span if span is None else span
        lead = self.o.dma_lead if lead is None else lead
        for k, (t, slot) in enumerate(issue):
            t.slot = slot
            if t.kind == 'wo' and t.arg == (0, 0): self.wo_rowpat()
            self.dma(t, 'B%d' % n, g + lead + k * span / len(issue), span / len(issue))
        for (t, dg) in self.touch_plan.pop(n, []):
            if isinstance(t, tuple): self.ctouch(t[0], t[1], g + dg)
            else: self.touch(t, g + dg)
        if self.o.codetouch and n >= 4 and n % self.o.codetouch == 1:
            t = vT[2]
            self.vops(['v_lshrrev_b32 %s, 9, %s' % (t, vTOUCH), 'v_lshlrev_b32 %s, 7, %s' % (t, t), 'v_add_u32 %s, %d, %s' % (t, self.o.ct_lead, t)])
            self.salu('s_getpc_b64 s[54:55]', ['B%d' % n], [sPC], nb=g + 28, due=g + 28)
            self.p.add('global_load_dword %s, %s, %s' % (aTOUCH, t, sPC), 'vld', [t, sPC], [], nb=g + 30, due=g + 30)
        for cb in self.after_bar.pop(n, []): cb('B%d' % n)
        return n
    def exwrite(self, text, src, wbar):
        tok = 'EX%d' % self.exi; self.exi += 1
        self.p.add(text, 'ldsw', [aEXw, src], [tok])
        self.bar_ex.setdefault(wbar, []).append(tok)
    def exchange(self, src, dst, off, wbar, rbar):
        self.exwrite('ds_write_b128 %s, %s offset:%d' % (aEXw, src, off), src, wbar)
        self.after_bar.setdefault(rbar, []).append(
            lambda b: self.p.add('ds_read_b128 %s, %s offset:%d' % (dst, aEXr, off), 'ldsr', [aEXr, b], [dst]))
    def rot(self):
        r = (self.exq & 1) * 1024; self.exq += 1; return r
    def trread(self, t, r, imm):
        f = self.frag(); b = self.base(r, t)
        for jj in range(2):
            self.p.add('ds_read_b64_tr_b16 %s, %s offset:%d' % (half(f, jj), r, b + imm(jj)), 'ldsr', [r, t.tok], [half(f, jj)])
        return f
    def xread(self, t, X):
        for (qt, p, pos) in t.arg:
            if t.kind == 'x': r = aXs if qt == 's' else aXab; b = self.base(r, t)
            else: r = aEs if qt == 's' else aEab; b = 0
            for e in range(2):
                d = X[qt][2 * p + e]
                self.p.add('ds_read_b128 %s, %s offset:%d' % (d, r, b + pos + 64 * e), 'ldsr', [r, t.tok], [d])
    def lane(self, t):
        self.vops(['v_bfe_u32 %s, %s, 4, 6' % (t, vLIN)])
    def x_addr(self):
        t0, t1, t2 = vT
        self.lane(t0)
        self.vops(['v_lshrrev_b32 %s, 4, %s' % (t1, t0), 'v_bfe_u32 %s, %s, 1, 2' % (t2, t0), 'v_xor_b32 %s, %s, %s' % (t1, t1, t2),
                   'v_and_b32 %s, 7, %s' % (t2, t0), 'v_lshlrev_b32 %s, 7, %s' % (t2, t2), 'v_lshl_add_u32 %s, %s, 4, %s' % (t1, t1, t2),
                   'v_bfe_u32 %s, %s, 3, 1' % (t0, t0),
                   'v_mul_u32_u24 %s, 2112, %s' % (t2, t0), 'v_add3_u32 %s, %s, %s, %s' % (aXab, t1, t2, sW8448),
                   'v_lshlrev_b32 %s, 11, %s' % (t2, t0), 'v_add3_u32 %s, %s, %s, %s' % (aEab, t1, t2, sEXM),
                   's_and_b32 %s, %s, 2' % (sTMP, sW), 's_mul_i32 %s, %s, 8448' % (sT2, sTMP),
                   'v_mul_u32_u24 %s, 8512, %s' % (t2, t0), 'v_add3_u32 %s, %s, %s, %s' % (aXs, t1, t2, sT2),
                   's_mul_i32 %s, %s, %d' % (sT2, sTMP, EXW), 's_add_u32 %s, %s, %d' % (sT2, sT2, EX),
                   'v_mul_u32_u24 %s, %d, %s' % (t2, EXW, t0), 'v_add3_u32 %s, %s, %s, %s' % (aEs, t1, t2, sT2)])
        for r in (aXab, aXs, aEab, aEs): self.pair[r] = 0
    def k_addr(self):
        t0, t1, t2 = vT
        self.lane(t0)
        self.vops(['v_and_b32 %s, 15, %s' % (t1, t0), 'v_mul_u32_u24 %s, 1056, %s' % (t1, t1), 'v_and_b32 %s, 48, %s' % (t0, t0),
                   's_mul_i32 %s, %s, 16960' % (sTMP, sPAR), 'v_add3_u32 %s, %s, %s, %s' % (aK[0][0], t0, t1, sTMP),
                   's_sub_u32 %s, 16960, %s' % (sTMP, sTMP), 'v_add3_u32 %s, %s, %s, %s' % (aK[1][1], t0, t1, sTMP),
                   's_mul_i32 %s, %s, 16832' % (sT2, sPAR), 's_add_u32 %s, %s, 64' % (sT2, sT2), 'v_add3_u32 %s, %s, %s, %s' % (aK[0][1], t0, t1, sT2),
                   's_sub_u32 %s, 16960, %s' % (sT2, sT2), 'v_add3_u32 %s, %s, %s, %s' % (aK[1][0], t0, t1, sT2)])
        for r in aK[0] + aK[1]: self.pair[r] = 0
    def wo_rowpat(self):
        t0, t1, t2 = vT
        self.lane(t0)
        self.vops(['v_and_b32 %s, 16, %s' % (t1, t0), 'v_bfe_u32 %s, %s, 5, 1' % (t2, t0), 'v_lshl_add_u32 %s, %s, 3, %s' % (t1, t2, t1),
                   'v_bfe_u32 %s, %s, 3, 1' % (t2, t0), 'v_add_u32 %s, %s, %s' % (t1, t1, t2), 'v_lshl_add_u32 %s, %s, 1, %s' % (t1, sW, t1),
                   'v_mul_u32_u24 %s, 896, %s' % (t1, t1), 'v_and_b32 %s, 7, %s' % (t0, t0), 'v_lshl_add_u32 %s, %s, 4, %s' % (vWROW, t0, t1),
                   's_mul_i32 %s, %s, 4224' % (sTMP, sPAR), 's_sub_u32 %s, 4224, %s' % (sT2, sTMP)])
        for c in range(2):
            self.vops(['v_add_u32 %s, %s, %s' % (aW[1][c], sT2, aW[0][c]), 'v_add_u32 %s, %s, %s' % (aW[0][c], sTMP, aW[0][c])])
            self.pair[aW[1][c]] = self.pair.get(aW[0][c], 0)
    def qtile(self, t, X, Q, mid=None):
        h, m, hf = t.arg
        acc = self.qacc; nk = 8 if hf else 6
        for dt in range(4):
            if mid and dt in mid: mid[dt]()
            fr = [self.trread(t, aW[0][dt >> 1], lambda jj, ks=ks: ks * 4224 + jj * 256 + 8 * (dt & 1)) for ks in range(nk)]
            for qt in (('s', 'a', 'b') if dt < 2 else ('a', 'b')):
                A = acc[(dt, qt)]
                for ks in range(nk):
                    self.mfma(A, fr[ks], X[qt][6 * hf + ks], '0' if (hf == 0 and ks == 0) else A, (fr + ['B1']) if self.p.nm == 0 else ())
                if hf == 1:
                    for i in range(4): self.valu('v_mul_f32 %s, %s, %s' % (reg(A, i), sSCALE, reg(A, i)), [sSCALE, reg(A, i)], [reg(A, i)])
                    tq = 2 * m + (dt >> 1); dst = Q[qt][tq]
                    D = dst if dst[0] == 'v' else acc[(dt & 2, qt)]
                    for i in range(2):
                        dd = reg(D, 2 * (dt & 1) + i)
                        self.valu('v_cvt_pk_bf16_f32 %s, %s, %s' % (dd, reg(A, 2 * i), reg(A, 2 * i + 1)), [reg(A, 2 * i), reg(A, 2 * i + 1)], [dd])
                        if dst[0] == 'a': self.valu('v_accvgpr_write_b32 %s, %s' % (reg(dst, 2 * (dt & 1) + i), dd), [dd], [reg(dst, 2 * (dt & 1) + i)])
                    if (dt & 1) and qt == 's': self.exchange(D, Q['s'][tq + 1], self.rot(), self.nbar, self.nbar)
    def qk(self, i, t, Q, rbar):
        P = self.P[i & 1]
        for ks in range(2):
            for jj in range(2):
                fr = []
                for u in range(8):
                    f = self.frag(); r = aK[ks][u & 1]; b = self.base(r, t)
                    self.p.add('ds_read_b128 %s, %s offset:%d' % (f, r, b + jj * 512 + 128 * (u >> 1)), 'ldsr', [r, t.tok], [f])
                    fr.append(f)
                for qt in (('s', 'a', 'b') if ks == 0 else ('a', 'b')):
                    S = SQ[self.si % len(SQ)]; self.si += 1
                    for u in range(8): self.mfma(S, fr[u], Q[qt][u], NEGM[qt] if u == 0 else S)
                    for e in range(4): self.p.add('v_exp_f32 %s, %s' % (reg(S, e), reg(S, e)), 'trans', [reg(S, e)], [reg(S, e)])
                    D = P[qt][ks]
                    for e in range(2):
                        self.valu('v_cvt_pk_bf16_f32 %s, %s, %s' % (reg(D, 2 * jj + e), reg(S, 2 * e), reg(S, 2 * e + 1)),
                                  [reg(S, 2 * e), reg(S, 2 * e + 1)], [reg(D, 2 * jj + e)])
                    for e in range(4): self.valu('v_add_f32 %s, %s, %s' % (vL[qt], vL[qt], reg(S, e)), [vL[qt], reg(S, e)], [vL[qt]])
                    if qt == 's' and jj == 1: self.exchange(D, P['s'][1], self.rot(), rbar, rbar)
    def xreduce(self, r, op):
        t = vT[0]
        for sw in ('32', '16'):
            self.valu('v_mov_b32 %s, %s' % (t, r), [r], [t])
            self.p.add('v_permlane%s_swap_b32 %s, %s' % (sw, r, t), 'trans', [r, t], [r, t], swap=True)
            self.valu('%s %s, %s, %s' % (op, r, r, t), [r, t], [r])
    def lfinish(self, h, btok):
        for qt in 'sab': self.xreduce(vL[qt], 'v_add_f32')
        off = self.rot(); n7 = self.nbar
        tok = 'EX%d' % self.exi; self.exi += 1
        self.p.add('ds_write_b32 %s, %s offset:%d' % (aEXw, vL['s'], off), 'ldsw', [aEXw, vL['s'], btok], [tok])
        self.bar_ex.setdefault(n7, []).append(tok)
        def fin(b):
            t = vT[1]
            self.p.add('ds_read_b32 %s, %s offset:%d' % (t, aEXr, off), 'ldsr', [aEXr, b], [t])
            self.valu('v_add_f32 %s, %s, %s' % (vL['s'], vL['s'], t), [vL['s'], t], [vL['s']])
            ls = [vL[x] for x in 'abs']
            self.valu('v_min3_f32 %s, %s, %s, %s' % (t, *ls), ls, [t])
            self.valu('v_cmp_gt_f32 %s, %s, %s' % (sCMP, sLO, t), [sLO, t], [sCMP])
            self.salu('s_or_b64 %s, %s, %s' % (sBAD, sBAD, sCMP), [sBAD, sCMP], [sBAD])
            self.valu('v_max3_f32 %s, %s, %s, %s' % (t, *ls), ls, [t])
            self.valu('v_cmp_lt_f32 %s, %s, %s' % (sCMP, sHI, t), [sHI, t], [sCMP])
            self.salu('s_or_b64 %s, %s, %s' % (sBAD, sBAD, sCMP), [sBAD, sCMP], [sBAD])
            for x in 'abs': self.p.add('v_rcp_f32 %s, %s' % (vL[x], vL[x]), 'trans', [vL[x]], [vL[x]])
            if h == 1:
                off2 = self.rot()
                self.salu('s_or_b32 %s, s46, s47' % sTMP, [sBAD], [sTMP])
                self.salu('s_andn2_b32 %s, %s, %s' % (sTMP, sTMP, sMODE), [sTMP, sMODE], [sTMP])
                self.valu('v_mov_b32 %s, %s' % (t, sTMP), [sTMP], [t])
                self.exwrite('ds_write_b32 %s, %s offset:%d' % (aEXw, t, off2), t, n7 + 1)
                def vote(b3):
                    t2 = vT[2]
                    self.vops(['v_bfe_u32 %s, %s, 4, 2' % (t2, vLIN), 'v_mul_u32_u24 %s, %d, %s' % (t2, EXW, t2), 'v_add_u32 %s, %d, %s' % (t2, EX + off2, t2)])
                    self.p.add('ds_read_b32 %s, %s' % (t2, t2), 'ldsr', [t2, b3], [t2])
                    self.valu('v_cmp_ne_u32 vcc, 0, %s' % t2, [t2], ['vcc'])
                    self.p.add('s_cmp_lg_u64 vcc, 0\n    s_cbranch_scc1 L_restart', 'br', ['vcc'], ['OKGO'], mind={'vcc': 5})
                self.after_bar.setdefault(n7 + 1, []).append(vote)
        self.after_bar.setdefault(n7, []).append(fin)
    def pv(self, i, t, O, OB):
        P = self.P[i & 1]
        for dt in range(16):
            c = (dt >> 1) & 1
            f = [self.trread(t, aV[ks][c], lambda jj: jj * 512 + 128 * (dt >> 2) + 32 * (dt & 1)) for ks in range(2)]
            seq = [('a', 0), ('a', 1), ('b', 1), ('b', 0)] + ([('s', 0), ('s', 1)] if c == 0 else [])
            for k, (qt, ks) in enumerate(seq):
                A = O[qt][dt]
                self.mfma(A, f[ks], P[qt][ks], '0' if (i == 0 and k % 2 == 0) else A)
            if i == 7 and (dt & 1):
                for qt in (('s', 'a', 'b') if c == 0 else ('a', 'b')):
                    D = OB[qt][dt >> 1]
                    for jj in range(2):
                        A = O[qt][dt - 1 + jj]
                        if A[0] == 'a':
                            T = D if jj == 0 else list(NEGM.values())[self.tq % 3]
                            if jj: self.tq += 1
                            for e in range(4): self.valu('v_accvgpr_read_b32 %s, %s' % (reg(T, e), reg(A, e)), [reg(A, e)], [reg(T, e)])
                            A = T
                        for e in range(4): self.valu('v_mul_f32 %s, %s, %s' % (reg(A, e), vL[qt], reg(A, e)), [vL[qt], reg(A, e)], [reg(A, e)])
                        for e in range(2):
                            self.valu('v_cvt_pk_bf16_f32 %s, %s, %s' % (reg(D, 2 * jj + e), reg(A, 2 * e), reg(A, 2 * e + 1)),
                                      [reg(A, 2 * e), reg(A, 2 * e + 1)], [reg(D, 2 * jj + e)])
                    if qt == 's':
                        nb = self.nbar + self.osdelay
                        self.exchange(D, OB['s'][(dt >> 1) + 1], 2048 + (dt >> 2) * 1024, nb, nb)
    def hookop(self, h, Q, tmp):
        allq = [x for qt in 'sab' for x in Q[qt]]
        self.p.add('s_cmp_lg_u32 %s, 0\n    s_cbranch_scc1 L_hook%d\nL_ret%d:' % (sMODE, h, h), 'br', allq + [sMODE],
                   list(NEGM.values()) + list(vL.values()) + vT + SQ[:3] + tmp + [sTMP, sHK])
        for qt in 'sab': self.valu('v_mov_b32 %s, 0' % vL[qt], [], [vL[qt]])
    def otile(self, t, OB):
        h, m = t.arg; acc = self.oacc
        for nt in range(4):
            fr = [self.trread(t, aW[u & 1][nt >> 1], lambda jj, u=u: (u >> 1) * 8448 + jj * 256 + 8 * (nt & 1)) for u in range(8)]
            for qt in (('a', 'b', 's') if nt < 2 else ('a', 'b')):
                A = acc[(nt, qt)]
                for u in range(8): self.mfma(A, fr[u], OB[h][qt][u], '0' if (h == 0 and u == 0) else A)
                if h == 1:
                    D = acc[(nt & 2, qt)]
                    for e in range(2):
                        self.valu('v_cvt_pk_bf16_f32 %s, %s, %s' % (reg(D, 2 * (nt & 1) + e), reg(A, 2 * e), reg(A, 2 * e + 1)),
                                  [reg(A, 2 * e), reg(A, 2 * e + 1)], [reg(D, 2 * (nt & 1) + e)])
                    if nt & 1:
                        c = 5 * m + {'a': 0, 'b': 1, 's': 2}[qt] + 3 * (nt >> 1)
                        self.salu('s_mov_b32 %s, %d' % (sST, c * 8192), [], [sST])
                        self.p.add('buffer_store_dwordx4 %s, %s, %s, %s offen%s' % (D, vP, sWS, sST, self.o.stflag), 'vst',
                                   [D, vP, sST, 'OKGO'], ['PST%d' % c], due=self.p.nm + 10)
    def out_addr(self):
        t0 = vT[0]
        self.lane(t0)
        self.vops(['v_lshlrev_b32 %s, 4, %s' % (vC, t0), 's_lshl_b32 %s, %s, 10' % (sTMP, sJ), 'v_add_u32 %s, %s, %s' % (vP, sTMP, vC),
                   'v_and_b32 %s, 15, %s' % (vO, t0), 'v_mul_u32_u24 %s, 1792, %s' % (vO, vO), 'v_lshlrev_b32 %s, 2, %s' % (vF, t0),
                   'v_and_b32 %s, 48, %s' % (t0, t0), 'v_add_u32 %s, %s, %s' % (vO, vO, t0)])
        for r in range(5):
            d = sJOB[r]
            txt = ['s_add_u32 {d}, {j}, %d' % (8 * r), 's_mul_i32 {t}, {d}, 52', 's_lshr_b32 {t}, {t}, 8', 's_mul_i32 {u}, {t}, 5',
                   's_sub_u32 {u}, {d}, {u}', 's_lshl_b32 {t}, {t}, 7', 's_cmp_ge_u32 {d}, 35', 's_cselect_b32 {d}, 0x40000000, {ob}',
                   's_add_u32 {d}, {d}, {t}', 's_cmp_ge_u32 {u}, 3', 's_cselect_b32 {t}, 1, 0', 's_cselect_b32 {h}, 3, 0', 's_sub_u32 {u}, {u}, {h}',
                   's_xor_b32 {t}, {t}, {par}', 's_lshl_b32 {t}, {t}, 6', 's_add_u32 {d}, {d}, {t}',
                   's_lshl_b32 {t}, {par}, 1', 's_add_u32 {t}, {t}, {u}', 's_cmp_eq_u32 {u}, 2', 's_cselect_b32 {t}, 4, {t}',
                   's_mul_i32 {t}, {t}, 28672', 's_add_u32 {d}, {d}, {t}']
            txt = [x.format(d=d, j=sJ, t=sTMP, u=sT2, h=sHK, ob=sOB, par=sPAR) for x in txt]
            k = 0
            while k < len(txt):
                n = 1
                if txt[k].startswith('s_cmp'):
                    while k + n < len(txt) and txt[k + n].startswith('s_cselect'): n += 1
                self.salu('\n    '.join(txt[k:k + n]), [d, sTMP, sT2, sHK], [d, sTMP, sT2, sHK]); k += n
    def publish(self, val, chunks, soft, nb=None):
        t = vT[1]
        self.valu('v_mov_b32 %s, %d' % (t, val), [], [t])
        self.vops(['v_lshlrev_b32 %s, 2, %s' % (vT[2], vC), 's_lshl_b32 %s, %s, 2' % (sTCH, sJ), 's_add_u32 %s, %s, %d' % (sTCH, sTCH, PREG)])
        self.p.add('buffer_store_dword %s, %s, %s, %s offen sc1' % (t, vT[2], sWS, sTCH), 'vst', [t, vT[2], sTCH, 'PUB'] + ['PST%d' % c for c in chunks],
                   [], soft=soft, nb=nb, due=nb)
    def poll(self, name, load, dst, check, nb, soft, rd):
        self.p.add(load, 'vld', rd, [dst, 'PUB'], nb=nb, due=nb)
        self.p.add(check + '\n    s_cbranch_scc0 L_spin%s\nL_back%s:' % (name, name), 'br', [dst] + list(rd), [dst, 'vcc', sHK, 'GO' + name], soft=soft,
                   due=None if nb is None else nb + soft)
        self.spins.append((name, load, check))
    def pollflags(self, name, val, nb, soft, rd=()):
        t = vT[0]
        self.salu('s_mov_b32 %s, %d' % (sT2, PREG), [], [sT2])
        self.poll(name, 'buffer_load_dword %s, %s, %s, %s offen sc1' % (t, vF, sWS, sT2), t,
                  'v_cmp_le_u32 vcc, %d, %s\n    s_nop 4\n    s_cmp_eq_u32 vcc_lo, 0xff' % (val, t), nb, soft, [vF, sT2] + list(rd))
    def jobload(self, r, L, go, nb=None, step=0):
        for jj in range(8):
            if jj % 4 == 0:
                so = self.soff()
                self.salu('s_lshl_b32 %s, %s, 13' % (so, sJ), [sJ], [so]); self.salu('s_add_u32 %s, %s, %d' % (so, so, r * 65536 + jj * 1024), [so], [so])
            pos = None if nb is None else nb + jj * step
            self.p.add('buffer_load_dwordx4 %s, %s, %s, %s offen offset:%d sc1' % (L[jj], vC, sWS, so, (jj & 3) * 1024), 'vld', [vC, so, go], [L[jj]], nb=pos, due=pos)
    def jobsum(self, r, L, T):
        A = [reg(T[0], e) for e in range(4)] + [reg(T[1], e) for e in range(4)]
        for jj in range(8):
            for e in range(4):
                src = reg(L[jj], e); t0, t1 = reg(T[2], (2 * e) & 3), reg(T[2], (2 * e + 1) & 3)
                if src[0] == 'a':
                    self.valu('v_accvgpr_read_b32 %s, %s' % (t1, src), [src], [t1]); src = t1
                if jj == 0: self.vops(['v_lshlrev_b32 %s, 16, %s' % (A[2 * e], src), 'v_and_b32 %s, 0xffff0000, %s' % (A[2 * e + 1], src)])
                else: self.vops(['v_lshlrev_b32 %s, 16, %s' % (t0, src), 'v_and_b32 %s, 0xffff0000, %s' % (t1, src),
                                 'v_add_f32 %s, %s, %s' % (A[2 * e], A[2 * e], t0), 'v_add_f32 %s, %s, %s' % (A[2 * e + 1], A[2 * e + 1], t1)])
        for e in range(4): self.vops(['v_cvt_pk_bf16_f32 %s, %s, %s' % (A[e], A[2 * e], A[2 * e + 1])])
        self.p.add('buffer_store_dwordx4 %s, %s, %s, %s offen' % (T[0], vO, sOUT, sJOB[r]), 'vst', [T[0], vO, sJOB[r]], [])
    def build(self):
        o = self.o
        W = [[Tile('wq%d_%d' % (h, k), 'wq', (h, k >> 1, k & 1)) for k in range(8)] for h in range(2)]
        def attn_tiles(h):
            l = [('k', 0)]
            for i in range(1, 8): l += [('k', i), ('v', i - 1)]
            return [Tile('%s%d_%d' % (k, h, i), k, (h, i)) for k, i in l + [('v', 7)]]
        A = [attn_tiles(h) for h in range(2)]
        WO = [Tile('wo%d_%d' % (m, h), 'wo', (h, m)) for m in range(7) for h in range(2)]
        def xt(name, p):
            return (Tile(name + 'A', 'x', [('a', p, 0), ('b', p, 1024), ('s', p, 5248), ('a', p + 1, 4224), ('s', p + 1, 7360)]),
                    Tile(name + 'B', 'x', [('b', p + 1, 0), ('a', p + 2, 1024), ('b', p + 2, 4224), ('s', p + 2, 5248)]))
        XA0, XB0 = xt('x0', 0); XA1, XB1 = xt('x1', 4); XA2, XB2 = xt('x2', 4)
        XE = Tile('xe', 'xe', [('a', 3, 2048), ('b', 3, 3072), ('s', 3, 6144)])
        self.P = [{'a': [PQ[5 * b], PQ[5 * b + 1]], 'b': [PQ[5 * b + 2], PQ[5 * b + 3]], 's': [PQ[5 * b + 4], PX[b]]} for b in range(2)]
        self.qacc = dict(zip([(0, 's'), (0, 'a'), (0, 'b'), (1, 's'), (1, 'a'), (1, 'b'), (2, 'a'), (2, 'b'), (3, 'a'), (3, 'b')], PQ))
        self.oacc = dict(zip([(0, 'a'), (0, 'b'), (0, 's'), (1, 'a'), (1, 'b'), (1, 's'), (2, 'a'), (2, 'b'), (3, 'a'), (3, 'b')], PQ))
        def xmap(lst): return {qt: [lst[3 * ks + k] for ks in range(14)] for k, qt in enumerate('sab')}
        X0 = xmap(ABIG[:18] + BIG[:24]); X1 = xmap(ABIG)
        Q0 = {qt: ABIG[18 + 8 * k: 26 + 8 * k] for k, qt in enumerate('sab')}
        def omap(lst):
            O = {'a': [None] * 16, 'b': [None] * 16, 's': [None] * 16}; k = 0
            for u in range(8):
                for qt in (('s', 'a', 'b') if u % 2 == 0 else ('a', 'b')):
                    O[qt][2 * u] = lst[k]; O[qt][2 * u + 1] = lst[k + 1]; k += 2
            return O
        O0 = omap(BIG); O1 = omap(ABIG[:40])
        OB0 = {qt: [O0[qt][2 * u] for u in range(8)] for qt in 'sab'}
        Q1 = {qt: [O0[qt][2 * u + 1] for u in range(8)] for qt in 'sab'}
        for u in range(1, 8, 2): OB0['s'][u] = OPART0[u >> 1]; Q1['s'][u] = QPART1[u >> 1]
        OB1 = Q1
        self.maps = dict(Q0=Q0, Q1=Q1)
        QB = [2, 26]
        self.touch_plan = {}
        for h in range(2):
            for (at, tile) in o.touch:
                self.touch_plan.setdefault(QB[h] + int(at // 1), []).append((A[h][tile], int((at % 1) * 70) + 5))
        if o.wtouch & 2:
            self.touch_plan.setdefault(QB[1] - 4, []).append((('wq', (1, 0, 2)), 68))
        if o.wtouch & 4:
            for k, (at, dg) in enumerate(((-4, 68), (0, 10), (4, 10))):
                self.touch_plan.setdefault(QB[1] + 24 + at, []).append((('wo', (1 + 2 * k, 1)), dg))
        if o.wtouch & 1:
            self.ctouch('x', (0, 3), None, 'PRE'); self.ctouch('wq', (0, 0, o.wt0), None, 'PRE')
        for t, s in ((XA0, 0), (XB0, 2), (W[0][0], 1), (XE, None), (XA1, 3)):
            t.slot = s; self.dma(t, 'PRE', -100, 0)
        if (o.wtouch & 1) and o.wt0 < 2: self.ctouch('wq', (0, 1 << o.wt0, 2), None, 'PRE')
        self.x_addr()
        self.setfr(FR + SQ + PX)
        self.bar(ready=[XA0, XB0, W[0][0]])
        self.xread(XA0, X0); self.xread(XB0, X0)
        self.bar(free=[XA0, XB0], issue=[(W[0][1], 0), (XB1, 2)], span=24, lead=0, waitregs=ABIG[:18])
        def mid0():
            self.bar(ready=[XE, XA1]); self.xread(XE, X0); self.xread(XA1, X0)
        self.qtile(W[0][0], X0, Q0, {2: mid0})
        self.bar(ready=[W[0][1], XB1], free=[W[0][0], XA1], issue=[(W[0][2], 1), (W[0][3], 3)], span=40)
        self.xread(XB1, X0)
        self.qtile(W[0][1], X0, Q0)
        self.bar(ready=[W[0][2]], free=[W[0][1], XB1], issue=[(W[0][4], 0), (W[0][5], 2)], span=50)
        self.k_addr()
        self.vops(['v_mov_b32 %s, 0' % vT[1], 'v_bfe_u32 %s, %s, 4, 6' % (vT[2], vLIN), 'v_lshlrev_b32 %s, 6, %s' % (vT[2], vT[2]),
                   's_lshl_b32 %s, %s, 2' % (sTCH, sJ), 's_add_u32 %s, %s, %d' % (sTCH, sTCH, PREG)])
        self.p.add('buffer_store_dword %s, %s, %s, %s offen sc1' % (vT[1], vT[2], sWS, sTCH), 'vst', [vT[1], vT[2], sTCH], ['FLAG0'], due=self.p.nm + 30)
        self.bar_ex.setdefault(QB[0] + 10, []).append('FLAG0')
        def announce(b):
            self.valu('v_mov_b32 %s, 1' % vT[1], [], [vT[1]])
            self.p.add('buffer_store_byte %s, %s, %s, %s offen sc1' % (vT[1], vTOUCH, sDBG, sJ), 'vst', [vT[1], vTOUCH, sJ, b], [], due=self.p.nm + 40)
        self.after_bar.setdefault(QB[0] + 10, []).append(announce)
        self.qtile(W[0][2], X0, Q0)
        def stream(seq, k):
            self.bar(ready=[seq[k]], free=[seq[k - 1]], issue=[(seq[k + 3], seq[k - 1].slot)] if k + 3 < len(seq) else [])
        def attention(h, seq, k0, Q, O, OB, tmp, tail):
            stream(seq, k0)
            self.setfr(FR)
            self.hookop(h, Q, tmp)
            self.stamp()
            self.qk(0, seq[k0], Q, self.nbar)
            k = k0 + 1
            for i in range(1, 8):
                stream(seq, k); self.qk(i, seq[k], Q, self.nbar + (1 if i < 7 else 0)); k += 1
                stream(seq, k)
                if i == 7:
                    self.lfinish(h, 'B%d' % (self.nbar - 1)); tail(0)
                self.pv(i - 1, seq[k], O, OB); k += 1
            tail(1)
            self.pv(7, seq[k], O, OB)
            self.stamp()
        seq0 = W[0] + A[0] + [XA2, XB2]
        for k in range(3, 8):
            stream(seq0, k); self.qtile(W[0][k], X0, Q0)
        V6, V7 = A[0][14], A[0][15]
        def tail0(st):
            if st == 0:
                self.x_addr(); self.xread(XE, X1)
            else:
                self.bar(ready=[V7, XA2], free=[V6, XE], issue=[(W[1][0], V6.slot)], span=30); self.xread(XA2, X1)
        self.osdelay = 2
        attention(0, seq0, 8, Q0, O0, OB0, BIG[:8], tail0)
        self.setfr(FR + SQ + PX)
        self.bar(ready=[W[1][0], XB2], free=[V7, XA2], issue=[(W[1][1], XA2.slot), (W[1][2], V7.slot)], span=40)
        self.xread(XB2, X1)
        self.qtile(W[1][0], X1, Q1)
        self.bar(ready=[W[1][1]], free=[W[1][0], XB2], issue=[(W[1][3], W[1][0].slot), (W[1][4], XB2.slot)], span=60)
        self.k_addr()
        self.qtile(W[1][1], X1, Q1)
        seq1 = W[1] + A[1] + WO
        for k in range(2, 8):
            stream(seq1, k); self.qtile(W[1][k], X1, Q1)
        def tail1(st):
            if st == 0: self.out_addr()
            else: stream(seq1, 23)
        self.osdelay = 1
        attention(1, seq1, 8, Q1, O1, OB1, ABIG[:8], tail1)
        self.setfr(FR + SQ + PX)
        LA = [ABIG[8 * r: 8 * r + 8] for r in range(3)]
        for k in range(14):
            stream(seq1, 24 + k)
            g = self.p.nm
            if k == 3:
                d = half(NEGM['a'], 0)
                self.poll('R', 'buffer_load_dwordx2 %s, off, %s, 0 sc1' % (d, sDBG), d,
                          'v_and_b32 %s, %s, %s\n    v_cmp_eq_u32 vcc, 0x01010101, %s\n    s_nop 4\n    s_cmp_eq_u32 vcc_lo, -1' % (reg(d, 0), reg(d, 0), reg(d, 1), reg(d, 0)),
                          g + 10, 100, [])
            if k == 10: self.publish(1, range(24), o.pub_soft, g + o.pub_at)
            if k == 12:
                self.pollflags('A', 1, g + o.poll_at, o.poll_soft, ['GOR'])
                for r in range(3): self.jobload(r, LA[r], 'GOA', g + o.poll_at + o.poll_soft + 2 + 32 * r, 4)
            self.otile(WO[k], [OB0, OB1])
        self.stamp()
        T3 = list(NEGM.values())
        self.jobsum(0, LA[0], T3)
        self.publish(2, range(24, 35), 0)
        self.jobsum(1, LA[1], BIG[0:3]); self.jobsum(2, LA[2], BIG[3:6])
        self.pollflags('B', 2, None, 0)
        self.jobload(3, BIG[8:16], 'GOB'); self.jobload(4, BIG[16:24], 'GOB')
        self.jobsum(3, BIG[8:16], BIG[24:27]); self.jobsum(4, BIG[16:24], BIG[27:30])
        assert not self.bar_ex and not self.after_bar and not self.touch_plan, (self.bar_ex, self.after_bar.keys(), self.touch_plan.keys())
        return self.p.schedule()
    def hook(self, h):
        Q = self.maps['Q%d' % h]; F = BIG[:8] if h == 0 else ABIG[:8]
        a = Asm(); t0, t1, t2 = vT
        a.label('L_hook%d' % h)
        a('v_bfe_u32 %s, %s, 4, 6' % (t2, vLIN))
        a('v_and_b32 %s, 15, %s\nv_lshlrev_b32 %s, 9, %s' % (t0, t2, t0, t0))
        a('v_and_b32 %s, 48, %s\nv_add_u32 %s, %s, %s' % (t2, t2, t0, t0, t2))
        a('s_lshl_b32 %s, %s, 6' % (sTMP, sPAR))
        a('v_add_u32 %s, %s, %s\nv_xor_b32 %s, 64, %s' % (t0, sTMP, t0, t1, t0))
        for qt in 'sab': a('v_mov_b32 %s, 0xff800000' % vL[qt])
        a('s_mov_b32 %s, %d' % (sHK, h * 262144))
        a.label('L_hookloop%d' % h)
        for t in range(8): a('buffer_load_dwordx4 %s, %s, %s, %s offen offset:%d' % (F[t], (t0, t1)[t & 1], sK, sHK, 128 * (t >> 1)))
        a('s_waitcnt vmcnt(0)')
        for k, qt in enumerate('sab'):
            for t in range(8): a('v_mfma_f32_16x16x32_bf16 %s, %s, %s, %s' % (SQ[k], F[t], Q[qt][t], '0' if t == 0 else SQ[k]))
        a('s_nop 7\ns_nop 1')
        for k, qt in enumerate('sab'):
            a('v_max3_f32 %s, %s, %s, %s' % (vL[qt], vL[qt], reg(SQ[k], 0), reg(SQ[k], 1)))
            a('v_max3_f32 %s, %s, %s, %s' % (vL[qt], vL[qt], reg(SQ[k], 2), reg(SQ[k], 3)))
        a('s_add_u32 %s, %s, 8192\ns_cmp_lt_u32 %s, %d\ns_cbranch_scc1 L_hookloop%d' % (sHK, sHK, sHK, (h + 1) * 262144, h))
        for qt in 'sab':
            for sw in ('32', '16'):
                a('v_mov_b32 %s, %s\ns_nop 1\nv_permlane%s_swap_b32 %s, %s\ns_nop 1\nv_max_f32 %s, %s, %s' % (t2, vL[qt], sw, vL[qt], t2, vL[qt], vL[qt], t2))
            for e in range(4): a('v_sub_f32 %s, 0, %s' % (reg(NEGM[qt], e), vL[qt]))
        a('s_nop 2\ns_branch L_ret%d' % h)
        return a.text()
    def spincode(self):
        a = Asm()
        for name, load, check in self.spins:
            a.label('L_spin' + name)
            a('s_mov_b32 %s, 0x40000' % sHK)
            a.label('L_spinloop' + name)
            a(load); a('s_waitcnt vmcnt(0)'); a(check)
            a('s_cbranch_scc1 L_back%s\ns_sub_u32 %s, %s, 1\ns_cmp_lg_u32 %s, 0\ns_cbranch_scc1 L_spinloop%s\ns_branch L_back%s' % (name, sHK, sHK, sHK, name, name))
        return a.text()

def prologue(o):
    a = Asm()
    a("""
    s_cmp_ge_u32 s2, 256
    s_cbranch_scc1 L_end
    EARLY_TOUCH
    s_and_b32 s61, s2, 7
    s_lshr_b32 s62, s2, 3
    s_lshr_b32 s63, s61, 2
    s_mul_i32 s50, s63, 40
    s_add_u32 s56, s0, s50
    s_addc_u32 s57, s1, 0
    s_load_dwordx2 s[8:9], s[56:57], 0
    s_load_dwordx2 s[20:21], s[56:57], 24
    s_load_dwordx2 s[12:13], s[56:57], 8
    s_load_dwordx2 s[16:17], s[56:57], 16
    s_load_dwordx2 s[24:25], s[56:57], 32
    s_load_dwordx2 s[28:29], s[0:1], 96
    s_load_dwordx2 s[4:5], s[0:1], 80
    s_load_dwordx2 s[96:97], s[0:1], 88
    """)
    if o.stamps == 1: a('s_memrealtime s[64:65]\ns_memtime s[66:67]')
    if o.stamps == 2: a('s_memtime s[64:65]')
    if o.map == 'B': a('s_and_b32 s38, s61, 3\ns_lshl_b32 s38, s38, 1\ns_and_b32 s50, s62, 1\ns_add_u32 s38, s38, s50\ns_lshr_b32 s60, s62, 1')
    if o.map == 'C': a('s_and_b32 s38, s61, 1\ns_lshl_b32 s38, s38, 2\ns_and_b32 s50, s62, 3\ns_add_u32 s38, s38, s50\ns_and_b32 s60, s61, 2\ns_lshl_b32 s60, s60, 2\ns_lshr_b32 s50, s62, 2\ns_add_u32 s60, s60, s50')
    if o.map == 'A': a('s_and_b32 s38, s62, 7\ns_and_b32 s60, s61, 3\ns_lshl_b32 s60, s60, 2\ns_lshr_b32 s50, s62, 3\ns_add_u32 s60, s60, s50')
    nx, nw = {'A': (8, 4), 'B': (2, 16), 'C': (4, 8)}[o.map]
    a('s_and_b32 s61, s38, %d\ns_and_b32 s62, s60, %d' % (nx - 1, nw - 1))
    a("""
    v_lshrrev_b32 v21, 6, v0
    v_lshlrev_b32 v15, 7, v0
    v_readfirstlane_b32 s32, v21
    v_and_b32 v21, 63, v0
    s_mov_b32 s43, 0
    s_mov_b32 s10, 143360
    s_mov_b32 s11, 0x20000
    s_mov_b32 s14, 524288
    s_mov_b32 s15, 0x20000
    s_mov_b32 s18, 524288
    s_mov_b32 s19, 0x20000
    s_mov_b32 s23, 0x20000
    s_mov_b32 s26, 458752
    s_mov_b32 s27, 0x20000
    s_mov_b32 s31, 0x20000
    s_mov_b32 s6, 4587520
    s_mov_b32 s7, 0x20000
    s_mov_b32 s98, 16
    s_mov_b32 s99, 0x20000
    s_and_b32 s33, s32, 1
    s_mul_i32 s34, s32, 8448
    s_lshr_b32 s59, s32, 1
    s_lshl_b32 s35, s32, 10
    s_lshl_b32 s50, s33, 3
    s_add_u32 s35, s35, s50
    s_lshl_b32 s50, s59, 6
    s_add_u32 s35, s35, s50
    s_lshl_b32 s50, s33, 6
    s_add_u32 s39, s34, s50
    s_mul_i32 s37, s59, 71680
    s_mul_i32 s36, s33, 28672
    s_add_u32 s36, s36, s37
    s_mul_i32 s50, s33, 7168
    s_add_u32 s37, s37, s50
    s_add_u32 s37, s37, 57344
    s_lshl_b32 s50, s32, 13
    v_lshl_add_u32 v12, v21, 4, s50
    v_lshrrev_b32 v22, 3, v21
    v_mul_u32_u24 v14, 896, v22
    v_lshrrev_b32 v22, 4, v21
    v_and_b32 v23, 7, v21
    v_xor_b32 v22, v22, v23
    v_lshl_add_u32 v14, v22, 4, v14
    """)
    a('s_mov_b32 s30, %d\ns_mul_i32 s3, s32, %d\ns_add_u32 s3, s3, %d' % (PREG + 32, EXW, EX))
    a('s_mov_b32 %s, 0x%x\ns_mov_b32 %s, 0x%x\ns_mov_b32 %s, 0x%x' % (sSCALE, SCALE, sLO, (127 - 30) << 23, sHI, (127 + 30) << 23))
    a("""
    s_mul_i32 s100, s60, 10
    s_mul_i32 s50, s59, 5
    s_add_u32 s100, s100, s50
    s_mul_i32 s100, s100, 28672
    s_mul_i32 s50, s63, 896
    s_add_u32 s100, s100, s50
    s_waitcnt lgkmcnt(0)
    s_mul_i32 s50, s60, 143360
    s_add_u32 s8, s8, s50
    s_addc_u32 s9, s9, 0
    s_lshl_b32 s50, s38, 10
    s_add_u32 s20, s20, s50
    s_addc_u32 s21, s21, 0
    s_sub_u32 s22, 3670016, s50
    s_lshl_b32 s58, s60, 3
    s_add_u32 s58, s58, s38
    KVOFF
    s_add_u32 s12, s12, s50
    s_addc_u32 s13, s13, 0
    s_add_u32 s16, s16, s50
    s_addc_u32 s17, s17, 0
    s_mul_i32 s50, s38, 458752
    s_add_u32 s24, s24, s50
    s_addc_u32 s25, s25, 0
    s_lshl_b32 s58, s63, 4
    s_add_u32 s58, s58, s60
    s_lshl_b32 s50, s58, 3
    s_add_u32 s96, s96, s50
    s_addc_u32 s97, s97, 0
    s_lshl_b32 s58, s58, 2
    s_add_u32 s58, s58, s32
    """)
    a('s_mul_i32 s50, s58, %d\ns_add_u32 s28, s28, s50\ns_addc_u32 s29, s29, 0' % PSTRIDE)
    a.label('L_start')
    a("""
    s_mov_b64 s[46:47], 0
    v_bfe_u32 v21, v12, 4, 6
    v_bfe_u32 v13, v21, 5, 1
    v_lshlrev_b32 v13, 4, v13
    v_bfe_u32 v23, v21, 4, 1
    v_lshl_add_u32 v13, v23, 2, v13
    v_bfe_u32 v23, v21, 3, 1
    v_add_u32 v13, v13, v23
    s_lshr_b32 s101, s32, 1
    s_lshl_b32 s101, s101, 3
    s_lshl_b32 s50, s33, 1
    s_add_u32 s101, s101, s50
    v_add_u32 v13, s101, v13
    v_lshlrev_b32 v13, 13, v13
    v_and_b32 v23, 7, v21
    v_lshl_add_u32 v13, v23, 4, v13
    """)
    t = a.text()
    et = 's_getpc_b64 s[54:55]\n    v_lshrrev_b32 v15, 1, v0\n    v_lshlrev_b32 v15, 7, v15\n    global_load_dword a252, v15, s[54:55]' if o.early else ''
    t = t.replace('EARLY_TOUCH', et).replace('KVOFF', 's_mov_b32 s50, 0' if o.fakekv else 's_lshl_b32 s50, s58, 19')
    if o.rot: t = t.replace('L_start:', '    s_lshr_b32 s63, s2, 3\n    s_mul_i32 s63, s63, %d\n    s_lshl_b32 s63, s63, 15\nL_start:' % o.rot)
    if o.pstamp:
        t = t.replace('    s_waitcnt lgkmcnt(0)\n    s_mul_i32 s50, s60, 143360', '    s_memtime s[66:67]\n    s_waitcnt lgkmcnt(0)\n    s_memtime s[68:69]\n    s_mul_i32 s50, s60, 143360')
        t += '    s_memtime s[70:71]\n'
    return t

def prologue2():
    return ["v_bfe_u32 v21, v12, 4, 6",
            "v_lshrrev_b32 v23, 2, v21", "v_mul_u32_u24 v4, 1056, v23", "v_and_b32 v22, 3, v21", "v_lshl_add_u32 v4, v22, 3, v4",
            "s_mul_i32 s101, s33, 16960", "s_mul_i32 s50, s33, 16832", "s_add_u32 s50, s50, 64", "v_add_u32 v5, s50, v4",
            "s_sub_u32 s50, 16960, s50", "v_add_u32 v6, s50, v4", "s_sub_u32 s50, 16960, s101", "v_add_u32 v7, s50, v4", "v_add_u32 v4, s101, v4",
            "v_bfe_u32 v23, v21, 3, 1", "v_mul_u32_u24 v8, 1032, v23", "v_bfe_u32 v23, v21, 4, 1", "v_mul_u32_u24 v23, 2112, v23", "v_add_u32 v8, v8, v23",
            "v_bfe_u32 v23, v21, 2, 1", "v_lshl_add_u32 v8, v23, 7, v8", "v_bfe_u32 v23, v21, 5, 1", "v_lshl_add_u32 v8, v23, 9, v8",
            "v_lshl_add_u32 v8, v22, 4, v8", "s_lshl_b32 s101, s33, 6", "s_sub_u32 s50, 64, s101", "v_add_u32 v9, s50, v8", "v_add_u32 v8, s101, v8",
            "v_lshl_add_u32 v16, v21, 4, s3", "s_xor_b32 s50, s32, 1", "s_mul_i32 s50, s50, %d" % EXW, "s_add_u32 s50, s50, %d" % EX,
            "v_lshl_add_u32 v17, v21, 4, s50"] + ["v_mov_b32 v%d, 0" % i for i in range(24, 36)]

def main(argv):
    ap = argparse.ArgumentParser()
    ap.add_argument('-o', default='k.s')
    ap.add_argument('--map', default='B')
    ap.add_argument('--stamps', type=int, default=0)
    ap.add_argument('--stiles', default='0:60:4')
    ap.add_argument('--lat_lds', type=float, default=7)
    ap.add_argument('--lat_vm', type=float, default=40)
    ap.add_argument('--late', type=float, default=1)
    ap.add_argument('--dma_span', type=float, default=60)
    ap.add_argument('--dma_lead', type=float, default=0)
    ap.add_argument('--kvflag', default=' nt')
    ap.add_argument('--wflag', default='')
    ap.add_argument('--xflag', default='')
    ap.add_argument('--codetouch', type=int, default=3)
    ap.add_argument('--ct_lead', type=int, default=6144)
    ap.add_argument('--wtouch', type=int, default=6)
    ap.add_argument('--touch', default='')
    ap.add_argument('--pub_at', type=int, default=70)
    ap.add_argument('--pub_soft', type=int, default=50)
    ap.add_argument('--poll_at', type=int, default=-10)
    ap.add_argument('--poll_soft', type=int, default=50)
    ap.add_argument('-v', action='store_true')
    ap.add_argument('--rep', type=int, default=1)
    ap.add_argument('--dbgstamp', type=int, default=0)
    ap.add_argument('--fakekv', type=int, default=0)
    ap.add_argument('--rot', type=int, default=0)
    ap.add_argument('--wt_lead', type=int, default=6)
    ap.add_argument('--wt0', type=int, default=2)
    ap.add_argument('--early', type=int, default=1)
    ap.add_argument('--pstamp', type=int, default=0)
    ap.add_argument('--stflag', default='sc1')
    o = ap.parse_args(argv)
    for k in ('kvflag', 'wflag', 'xflag', 'stflag'):
        v = getattr(o, k).strip().replace('+', ' ')
        setattr(o, k, (' ' + v) if v and v != 'none' else '')
    o.touch = [(float(x.split(':')[0]), int(x.split(':')[1])) for x in o.touch.split(',') if x]
    o.stiles = list(range(*map(int, o.stiles.split(':'))))[:14]
    g = Gen(o)
    if o.pstamp: g.nstamp = 4; o.stiles = o.stiles[:10]
    xa = g.x_addr
    def first_x():
        if o.pstamp: g.salu('s_memtime s[72:73]', ['PRE', 'm0'], ['STAMP'])
        g.vops(prologue2()); g.x_addr = xa; xa()
    g.x_addr = first_x
    out = g.build()
    body = prologue(o)
    body += ''.join('    ' + t + '\n' for t, k in out)
    a = Asm()
    if o.stamps:
        w = 4 if o.stamps == 1 else 2
        k = STAMP0 + w + w * g.nstamp; ns = g.nstamp + 2
        a('s_waitcnt vmcnt(0)')
        a('s_memrealtime s[%d:%d]\ns_memtime s[%d:%d]' % (k, k + 1, k + 2, k + 3) if w == 4 else 's_memtime s[%d:%d]' % (k, k + 1))
        a('s_load_dwordx2 s[40:41], s[0:1], 96\ns_waitcnt lgkmcnt(0)\ns_cmp_lg_u32 s32, 0\ns_cbranch_scc1 L_end')
        a('s_mul_i32 s50, s2, %d\ns_add_u32 s50, s50, 280000000\nv_mov_b32 v8, s50' % (ns * 16))
        for s in range(ns):
            for j in range(4): a('v_mov_b32 v%d, s%d' % (4 + j, STAMP0 + w * s + (j % w)))
            a('global_store_dwordx4 v8, v[4:7], s[40:41] offset:%d\ns_nop 3' % (16 * s))
        if o.dbgstamp:
            a('s_cmp_lg_u32 s2, 0\ns_cbranch_scc1 L_end\ns_load_dwordx2 s[40:41], s[0:1], 88\ns_waitcnt lgkmcnt(0)\nv_mov_b32 v8, 0')
            for s in range(ns - 1):
                a('s_sub_u32 s50, s%d, s%d\nv_mov_b32 v4, s50\nglobal_store_dword v8, v4, s[40:41] offset:%d' % (STAMP0 + 4 * s + 4, STAMP0 + 4 * s, 4 * s))
                a('s_sub_u32 s50, s%d, s%d\nv_mov_b32 v5, s50\nglobal_store_dword v8, v5, s[40:41] offset:%d\ns_nop 3' % (STAMP0 + 4 * s + 6, STAMP0 + 4 * s + 2, 32 + 4 * s))
        print('stamps: use --stamps %d' % (2 * ns))
    a('L_end:\ns_endpgm')
    a('L_restart:\ns_waitcnt vmcnt(0) lgkmcnt(0)\ns_barrier\ns_mov_b32 %s, -1\ns_branch L_start' % sMODE)
    body += a.text() + g.spincode() + g.hook(0) + g.hook(1) + '    .fill 8192, 4, 0xBF800000\n'
    txt = build([dict(name=NAME + '_kernel', grid=256, block=256, lds=LDS_BYTES, body=body, vgpr=512, sgpr=102, accum=256)] * o.rep)
    open(o.o, 'w').write(txt)
    tot, costs = estimate(out)
    nm = g.p.nm
    print('mfma %d  est cycles %d (ideal %d)  forced ops %d  instrs %d  bytes %d' % (nm, tot, nm * 16, g.p.stats['forced'], len(out), len(txt)))
    bounds = [0, 560, 1840, 2400, 3680, 4800]
    print('phase overhead:', [sum(c - 16 for i, c in costs if lo <= i < hi) for lo, hi in zip(bounds, bounds[1:])])
    if o.v:
        print('forced:', g.p.stats['forced_gaps'])
        print('over:', [(i, c) for i, c in costs if c > 16])

if __name__ == '__main__':
    main(sys.argv[1:])
```

```python
import sys, argparse, struct
from asmlib import *
from sched import Prog, estimate

SLOT = 33792; PAIR = 2 * SLOT
EX = 4 * SLOT; EXW = 7168
LDS_BYTES = 163840
SCALE = struct.unpack('<I', struct.pack('<f', 1.4426950408889634 / 16.0))[0]
PREG = 35 * 8192
PSTRIDE = PREG + 1024

def q(f, n): return '%s[%d:%d]' % (f, 4 * n, 4 * n + 3)
def VQ(n): return q('v', n)
def AQ(n): return q('a', n)
def reg(quad, i):
    f = quad[0]; lo = int(quad[2:-1].split(':')[0]); return '%s%d' % (f, lo + i)
def half(quad, h):
    f = quad[0]; lo = int(quad[2:-1].split(':')[0]) + 2 * h; return '%s[%d:%d]' % (f, lo, lo + 1)

aK = [['v0', 'v1'], ['v2', 'v3']]; aV = [['v4', 'v5'], ['v6', 'v7']]; aW = [['v8', 'v9'], ['v10', 'v11']]
aXab, aXs, aEab, aEs = 'v0', 'v1', 'v2', 'v3'
vP, vC, vO, vF = 'v0', 'v1', 'v2', 'v3'
vLIN, vWROW, vX, vTOUCH, aEXw, aEXr = 'v12', 'v13', 'v14', 'v15', 'v16', 'v17'
vL = {'a': 'v18', 'b': 'v19', 's': 'v20'}
vT = ['v21', 'v22', 'v23']
NEGM = {'a': VQ(6), 'b': VQ(7), 's': VQ(8)}
SQ = [VQ(9 + i) for i in range(5)]
PQ = [VQ(14 + i) for i in range(10)]
BIG = [VQ(24 + i) for i in range(40)]
FR = [AQ(i) for i in range(10)]
PX = [AQ(10), AQ(11)]
OPART0 = [AQ(12 + i) for i in range(4)]
QPART1 = [AQ(16 + i) for i in range(4)]
ABIG = [AQ(20 + i) for i in range(42)]
aTOUCH = 'a252'
sX, sK, sV, sWQ, sWO, sWS = 's[8:11]', 's[12:15]', 's[16:19]', 's[20:23]', 's[24:27]', 's[28:31]'
sW, sPAR, sW8448, sWPAD = 's32', 's33', 's34', 's35'
sXA, sXS, sJ = 's36', 's37', 's38'
sSOFF = ['s40', 's41']; sSCALE, sMODE, sLO, sHI = 's42', 's43', 's44', 's45'
sBAD = 's[46:47]'; sCMP = 's[48:49]'; sTMP = 's50'; sST = 's51'; sTCH = 's52'; sHK = 's53'
sPC = 's[54:55]'
sOUT, sDBG = 's[4:7]', 's[96:99]'
sXSM, sEXM = 's39', 's3'
sOB = 's100'; sT2 = 's101'; sSHX, sSHW = 's61', 's62'
sJOB = ['s56', 's57', 's58', 's59', 's60']
STAMP0 = 64

class Tile:
    def __init__(self, name, kind, arg): self.name, self.kind, self.arg = name, kind, arg; self.slot = None; self.nd = 0
    @property
    def tok(self): return 'T_' + self.name

class Gen:
    def __init__(self, o):
        self.o = o
        self.p = Prog(lat_lds=o.lat_lds, lat_vm=o.lat_vm, late=o.late)
        self.pair = {}
        self.frl = FR; self.fri = 0
        self.si = 0; self.soi = 0; self.exi = 0; self.exq = 0; self.tq = 0
        self.nbar = 0
        self.bar_ex = {}
        self.after_bar = {}
        self.nstamp = 0
        self.spins = []
    def valu(self, t, rd, wr, **k): return self.p.add(t, 'valu', rd, wr, **k)
    def salu(self, t, rd, wr, **k): return self.p.add(t, 'salu', rd, wr, **k)
    def vops(self, lines):
        for l in lines:
            ops = [x.strip() for x in l.split(None, 1)[1].split(',')]
            rd = [x for x in ops[1:] if x[0] in 'vs' and x[1:].isdigit()]
            (self.salu if l.startswith('s_') else self.valu)(l, rd, [ops[0]])
    def mfma(self, d, a, b, c, extra=()):
        self.p.add('v_mfma_f32_16x16x32_bf16 %s, %s, %s, %s' % (d, a, b, c), 'mfma', [a, b] + list(extra), [d], srcc=([] if c == '0' else [c]))
    def frag(self):
        f = self.frl[self.fri % len(self.frl)]; self.fri += 1; return f
    def setfr(self, l):
        self.frl = l; self.fri = 0
    def base(self, r, t):
        pr = t.slot >> 1
        if self.pair.get(r, 0) != pr:
            self.valu(('v_add_u32 %s, %d, %s' if pr else 'v_subrev_u32 %s, %d, %s') % (r, PAIR, r), [r], [r])
            self.pair[r] = pr
        return (t.slot & 1) * SLOT
    def tstamp(self, n):
        o = self.o
        if o.stamps != 2 or n not in o.stiles: return ''
        k = STAMP0 + 2 + 2 * self.nstamp; self.nstamp += 1
        return '\n    s_memtime s[%d:%d]' % (k, k + 1)
    def stamp(self):
        if self.o.stamps != 1: return
        k = STAMP0 + 4 + 4 * self.nstamp; self.nstamp += 1
        self.salu('s_memrealtime s[%d:%d]\n    s_memtime s[%d:%d]' % (k, k + 1, k + 2, k + 3), [], ['STAMP'], nb=self.p.nm, due=self.p.nm)
    def soff(self):
        so = sSOFF[self.soi & 1]; self.soi += 1; return so
    def kvoff(self, h, i, extra):
        if not self.o.rot: return ('s_mov_b32 %s, ' + str(h * 262144 + i * 32768 + extra), [])
        t = 's_add_u32 %%s, s63, %d|s_and_b32 %%s, %%s, 0x3ffff' % (i * 32768 + extra)
        if h: t += '|s_bitset1_b32 %s, 18'
        return (t, ['s63'])
    def dma(self, t, tok, g0, span):
        o = self.o; kind = t.kind
        slot = t.slot * SLOT if t.slot is not None else None
        items = []
        if kind in ('k', 'v'):
            h, i = t.arg
            for j in range(8):
                items.append((self.kvoff(h, i, (j >> 2) * 4096) if j % 4 == 0 else None,
                              (sW8448, slot + 32 * j + 4096 * (j >> 2)), vLIN, sK if kind == 'k' else sV, (j & 3) * 1024, o.kvflag))
        elif kind == 'wq':
            h, m, hf = t.arg
            for j in range(8 if hf else 6):
                items.append((('s_mov_b32 %s, ' + str((192 * hf + 32 * j) * 8192 + h * 512 + m * 128), []), (sWPAD, slot + 4224 * j), vWROW, sWQ, 0, o.wflag))
        elif kind == 'wo':
            h, m = t.arg
            for j in range(8):
                items.append((('s_mov_b32 %s, ' + str((h * 256 + 32 * j) * 896 + m * 128), []), (sWPAD, slot + 4224 * j), vWROW, sWO, 0, o.wflag))
        else:
            for (qt, p, pos) in t.arg:
                if kind == 'x': ab, sm, hs, b0 = sW8448, sXSM, 2112, slot
                else: ab, sm, hs, b0 = sEXM, sEXM, 2048, 0
                if qt == 's': items.append((('s_add_u32 %%s, %s, %d' % (sXS, 128 * p), [sXS]), (sm, b0 + pos), vX, sX, 0, o.xflag))
                else:
                    for hf in range(2):
                        items.append((('s_add_u32 %%s, %s, %d' % (sXA, 128 * p + 7168 * hf + (14336 if qt == 'b' else 0)), [sXA]),
                                      (ab, b0 + pos + hs * hf), vX, sX, 0, o.xflag))
        t.nd = len(items); so = None
        for j, (ss, (mb, mo), vo, srd, imm, fl) in enumerate(items):
            if ss is not None:
                so = self.soff()
                for l in ss[0].split('|'): self.salu(l.replace('%s', so), ss[1] + [so], [so])
            self.salu('s_add_u32 m0, %s, %d' % (mb, mo), [mb], ['m0'])
            self.p.add('buffer_load_dwordx4 %s, %s, %s offen offset:%d%s lds' % (vo, srd, so, imm, fl), 'dma', [vo, so, 'm0', tok],
                       ['D_%s_%d' % (t.name, j)], due=g0 + (j + 1) * span / len(items), mind={tok: (6 if tok != 'PRE' else 0)})
    def touch(self, t, nb, tok=None):
        extra = [tok] if tok else []
        if t.kind in ('k', 'v'):
            h, i = t.arg
            for l in self.kvoff(h, i, 0)[0].split('|'): self.salu(l.replace('%s', sTCH), [sTCH], [sTCH])
            vo, srd, fl = vTOUCH, sK if t.kind == 'k' else sV, self.o.kvflag
        else:
            h, m, hf = t.arg
            vo = vT[2]
            self.valu('v_lshlrev_b32 %s, 6, %s' % (vo, vTOUCH), [vTOUCH], [vo])
            self.salu('s_mov_b32 %s, %d' % (sTCH, 192 * hf * 8192 + h * 512 + m * 128), [], [sTCH])
            srd, fl = sWQ, self.o.wflag
        self.p.add('buffer_load_dword %s, %s, %s, %s offen%s' % (aTOUCH, vo, srd, sTCH, fl), 'vld', [vo, sTCH] + extra, [], nb=nb, due=nb)
    def ctouch(self, kind, arg, nb, tok=None):
        o = self.o; nx, nw = {'A': (8, 4), 'B': (2, 16), 'C': (4, 8)}[o.map]
        t0, t1 = vT[1], vT[2]
        if kind == 'x':
            p0, lg = arg; rows = 160 // nx; stride = 896; srd = sX; fl = o.xflag; sh = sSHX; col0 = 128 * p0; ncol = min(1 << lg, 7 - p0); base = 0
        elif kind == 'wq':
            h, m0, lg = arg; rows = 448 // nw; stride = 8192; srd = sWQ; fl = o.wflag; sh = sSHW; col0 = 512 * h + 128 * m0; ncol = min(1 << lg, 4 - m0); base = 0
        else:
            m0, lg = arg; rows = 512 // nw; stride = 896; srd = sWO; fl = o.wflag; sh = sSHW; col0 = 128 * m0; ncol = min(1 << lg, 7 - m0); base = 0
        for r0 in range(0, rows, 256 >> lg):
            n = min(rows - r0, 256 >> lg)
            self.vops(['v_lshrrev_b32 %s, %d, %s' % (t0, 7 + lg, vTOUCH), 'v_bfe_u32 %s, %s, 7, %d' % (t1, vTOUCH, lg)])
            self.valu('v_cmp_gt_u32 vcc, %d, %s' % (n, t0), [t0], ['vcc'])
            self.vops(['v_mul_u32_u24 %s, %d, %s' % (t0, stride, t0), 'v_lshl_add_u32 %s, %s, 7, %s' % (t0, t1, t0)])
            self.valu('v_cndmask_b32 %s, 2.0, %s, vcc' % (t0, t0), [t0, 'vcc'], [t0])
            if ncol < (1 << lg):
                self.valu('v_cmp_gt_u32 vcc, %d, %s' % (ncol, t1), [t1], ['vcc'])
                self.valu('v_cndmask_b32 %s, 2.0, %s, vcc' % (t0, t0), [t0, 'vcc'], [t0])
            self.vops(['s_mul_i32 %s, %s, %d' % (sTCH, sh, rows * stride), 's_add_u32 %s, %s, %d' % (sTCH, sTCH, base + r0 * stride + col0)])
            self.p.add('buffer_load_dword %s, %s, %s, %s offen%s' % (aTOUCH, t0, srd, sTCH, fl), 'vld', [t0, sTCH] + ([tok] if tok else []), [], nb=nb, due=nb)
            if nb is not None: nb += 40
    def bar(self, ready=(), free=(), issue=(), span=None, lead=None, waitregs=()):
        n = self.nbar; self.nbar += 1
        rd = ['D_%s_%d' % (t.name, j) for t in ready for j in range(t.nd)] + self.bar_ex.pop(n, []) + list(waitregs)
        wr = ['B%d' % n, 'B%d' % (n - 1)] + [t.tok for t in list(ready) + list(free)] + (['PRE'] if n == 0 else [])
        self.p.add('s_barrier' + self.tstamp(n), 'bar', rd, wr, soft=3)
        g = self.p.nm
        span = self.o.dma_span if span is None else span
        lead = self.o.dma_lead if lead is None else lead
        for k, (t, slot) in enumerate(issue):
            t.slot = slot
            if t.kind == 'wo' and t.arg == (0, 0): self.wo_rowpat()
            self.dma(t, 'B%d' % n, g + lead + k * span / len(issue), span / len(issue))
        for (t, dg) in self.touch_plan.pop(n, []):
            if isinstance(t, tuple): self.ctouch(t[0], t[1], g + dg)
            else: self.touch(t, g + dg)
        if self.o.codetouch and n >= 4 and n % self.o.codetouch == 1:
            t = vT[2]
            self.vops(['v_lshrrev_b32 %s, 9, %s' % (t, vTOUCH), 'v_lshlrev_b32 %s, 7, %s' % (t, t), 'v_add_u32 %s, %d, %s' % (t, self.o.ct_lead, t)])
            self.salu('s_getpc_b64 s[54:55]', ['B%d' % n], [sPC], nb=g + 28, due=g + 28)
            self.p.add('global_load_dword %s, %s, %s' % (aTOUCH, t, sPC), 'vld', [t, sPC], [], nb=g + 30, due=g + 30)
        for cb in self.after_bar.pop(n, []): cb('B%d' % n)
        return n
    def exwrite(self, text, src, wbar):
        tok = 'EX%d' % self.exi; self.exi += 1
        self.p.add(text, 'ldsw', [aEXw, src], [tok])
        self.bar_ex.setdefault(wbar, []).append(tok)
    def exchange(self, src, dst, off, wbar, rbar):
        self.exwrite('ds_write_b128 %s, %s offset:%d' % (aEXw, src, off), src, wbar)
        self.after_bar.setdefault(rbar, []).append(
            lambda b: self.p.add('ds_read_b128 %s, %s offset:%d' % (dst, aEXr, off), 'ldsr', [aEXr, b], [dst]))
    def rot(self):
        r = (self.exq & 1) * 1024; self.exq += 1; return r
    def trread(self, t, r, imm):
        f = self.frag(); b = self.base(r, t)
        for jj in range(2):
            self.p.add('ds_read_b64_tr_b16 %s, %s offset:%d' % (half(f, jj), r, b + imm(jj)), 'ldsr', [r, t.tok], [half(f, jj)])
        return f
    def xread(self, t, X):
        for (qt, p, pos) in t.arg:
            if t.kind == 'x': r = aXs if qt == 's' else aXab; b = self.base(r, t)
            else: r = aEs if qt == 's' else aEab; b = 0
            for e in range(2):
                d = X[qt][2 * p + e]
                self.p.add('ds_read_b128 %s, %s offset:%d' % (d, r, b + pos + 64 * e), 'ldsr', [r, t.tok], [d])
    def lane(self, t):
        self.vops(['v_bfe_u32 %s, %s, 4, 6' % (t, vLIN)])
    def x_addr(self):
        t0, t1, t2 = vT
        self.lane(t0)
        self.vops(['v_lshrrev_b32 %s, 4, %s' % (t1, t0), 'v_bfe_u32 %s, %s, 1, 2' % (t2, t0), 'v_xor_b32 %s, %s, %s' % (t1, t1, t2),
                   'v_and_b32 %s, 7, %s' % (t2, t0), 'v_lshlrev_b32 %s, 7, %s' % (t2, t2), 'v_lshl_add_u32 %s, %s, 4, %s' % (t1, t1, t2),
                   'v_bfe_u32 %s, %s, 3, 1' % (t0, t0),
                   'v_mul_u32_u24 %s, 2112, %s' % (t2, t0), 'v_add3_u32 %s, %s, %s, %s' % (aXab, t1, t2, sW8448),
                   'v_lshlrev_b32 %s, 11, %s' % (t2, t0), 'v_add3_u32 %s, %s, %s, %s' % (aEab, t1, t2, sEXM),
                   's_and_b32 %s, %s, 2' % (sTMP, sW), 's_mul_i32 %s, %s, 8448' % (sT2, sTMP),
                   'v_mul_u32_u24 %s, 8512, %s' % (t2, t0), 'v_add3_u32 %s, %s, %s, %s' % (aXs, t1, t2, sT2),
                   's_mul_i32 %s, %s, %d' % (sT2, sTMP, EXW), 's_add_u32 %s, %s, %d' % (sT2, sT2, EX),
                   'v_mul_u32_u24 %s, %d, %s' % (t2, EXW, t0), 'v_add3_u32 %s, %s, %s, %s' % (aEs, t1, t2, sT2)])
        for r in (aXab, aXs, aEab, aEs): self.pair[r] = 0
    def k_addr(self):
        t0, t1, t2 = vT
        self.lane(t0)
        self.vops(['v_and_b32 %s, 15, %s' % (t1, t0), 'v_mul_u32_u24 %s, 1056, %s' % (t1, t1), 'v_and_b32 %s, 48, %s' % (t0, t0),
                   's_mul_i32 %s, %s, 16960' % (sTMP, sPAR), 'v_add3_u32 %s, %s, %s, %s' % (aK[0][0], t0, t1, sTMP),
                   's_sub_u32 %s, 16960, %s' % (sTMP, sTMP), 'v_add3_u32 %s, %s, %s, %s' % (aK[1][1], t0, t1, sTMP),
                   's_mul_i32 %s, %s, 16832' % (sT2, sPAR), 's_add_u32 %s, %s, 64' % (sT2, sT2), 'v_add3_u32 %s, %s, %s, %s' % (aK[0][1], t0, t1, sT2),
                   's_sub_u32 %s, 16960, %s' % (sT2, sT2), 'v_add3_u32 %s, %s, %s, %s' % (aK[1][0], t0, t1, sT2)])
        for r in aK[0] + aK[1]: self.pair[r] = 0
    def wo_rowpat(self):
        t0, t1, t2 = vT
        self.lane(t0)
        self.vops(['v_and_b32 %s, 16, %s' % (t1, t0), 'v_bfe_u32 %s, %s, 5, 1' % (t2, t0), 'v_lshl_add_u32 %s, %s, 3, %s' % (t1, t2, t1),
                   'v_bfe_u32 %s, %s, 3, 1' % (t2, t0), 'v_add_u32 %s, %s, %s' % (t1, t1, t2), 'v_lshl_add_u32 %s, %s, 1, %s' % (t1, sW, t1),
                   'v_mul_u32_u24 %s, 896, %s' % (t1, t1), 'v_and_b32 %s, 7, %s' % (t0, t0), 'v_lshl_add_u32 %s, %s, 4, %s' % (vWROW, t0, t1),
                   's_mul_i32 %s, %s, 4224' % (sTMP, sPAR), 's_sub_u32 %s, 4224, %s' % (sT2, sTMP)])
        for c in range(2):
            self.vops(['v_add_u32 %s, %s, %s' % (aW[1][c], sT2, aW[0][c]), 'v_add_u32 %s, %s, %s' % (aW[0][c], sTMP, aW[0][c])])
            self.pair[aW[1][c]] = self.pair.get(aW[0][c], 0)
    def qtile(self, t, X, Q, mid=None):
        h, m, hf = t.arg
        acc = self.qacc; nk = 8 if hf else 6
        for dt in range(4):
            if mid and dt in mid: mid[dt]()
            fr = [self.trread(t, aW[0][dt >> 1], lambda jj, ks=ks: ks * 4224 + jj * 256 + 8 * (dt & 1)) for ks in range(nk)]
            for qt in (('s', 'a', 'b') if dt < 2 else ('a', 'b')):
                A = acc[(dt, qt)]
                for ks in range(nk):
                    self.mfma(A, fr[ks], X[qt][6 * hf + ks], '0' if (hf == 0 and ks == 0) else A, (fr + ['B1']) if self.p.nm == 0 else ())
                if hf == 1:
                    for i in range(4): self.valu('v_mul_f32 %s, %s, %s' % (reg(A, i), sSCALE, reg(A, i)), [sSCALE, reg(A, i)], [reg(A, i)])
                    tq = 2 * m + (dt >> 1); dst = Q[qt][tq]
                    D = dst if dst[0] == 'v' else acc[(dt & 2, qt)]
                    for i in range(2):
                        dd = reg(D, 2 * (dt & 1) + i)
                        self.valu('v_cvt_pk_bf16_f32 %s, %s, %s' % (dd, reg(A, 2 * i), reg(A, 2 * i + 1)), [reg(A, 2 * i), reg(A, 2 * i + 1)], [dd])
                        if dst[0] == 'a': self.valu('v_accvgpr_write_b32 %s, %s' % (reg(dst, 2 * (dt & 1) + i), dd), [dd], [reg(dst, 2 * (dt & 1) + i)])
                    if (dt & 1) and qt == 's': self.exchange(D, Q['s'][tq + 1], self.rot(), self.nbar, self.nbar)
    def qk(self, i, t, Q, rbar):
        P = self.P[i & 1]
        for ks in range(2):
            for jj in range(2):
                fr = []
                for u in range(8):
                    f = self.frag(); r = aK[ks][u & 1]; b = self.base(r, t)
                    self.p.add('ds_read_b128 %s, %s offset:%d' % (f, r, b + jj * 512 + 128 * (u >> 1)), 'ldsr', [r, t.tok], [f])
                    fr.append(f)
                for qt in (('s', 'a', 'b') if ks == 0 else ('a', 'b')):
                    S = SQ[self.si % len(SQ)]; self.si += 1
                    for u in range(8): self.mfma(S, fr[u], Q[qt][u], NEGM[qt] if u == 0 else S)
                    for e in range(4): self.p.add('v_exp_f32 %s, %s' % (reg(S, e), reg(S, e)), 'trans', [reg(S, e)], [reg(S, e)])
                    D = P[qt][ks]
                    for e in range(2):
                        self.valu('v_cvt_pk_bf16_f32 %s, %s, %s' % (reg(D, 2 * jj + e), reg(S, 2 * e), reg(S, 2 * e + 1)),
                                  [reg(S, 2 * e), reg(S, 2 * e + 1)], [reg(D, 2 * jj + e)])
                    for e in range(4): self.valu('v_add_f32 %s, %s, %s' % (vL[qt], vL[qt], reg(S, e)), [vL[qt], reg(S, e)], [vL[qt]])
                    if qt == 's' and jj == 1: self.exchange(D, P['s'][1], self.rot(), rbar, rbar)
    def xreduce(self, r, op):
        t = vT[0]
        for sw in ('32', '16'):
            self.valu('v_mov_b32 %s, %s' % (t, r), [r], [t])
            self.p.add('v_permlane%s_swap_b32 %s, %s' % (sw, r, t), 'trans', [r, t], [r, t], swap=True)
            self.valu('%s %s, %s, %s' % (op, r, r, t), [r, t], [r])
    def lfinish(self, h, btok):
        for qt in 'sab': self.xreduce(vL[qt], 'v_add_f32')
        off = self.rot(); n7 = self.nbar
        tok = 'EX%d' % self.exi; self.exi += 1
        self.p.add('ds_write_b32 %s, %s offset:%d' % (aEXw, vL['s'], off), 'ldsw', [aEXw, vL['s'], btok], [tok])
        self.bar_ex.setdefault(n7, []).append(tok)
        def fin(b):
            t = vT[1]
            self.p.add('ds_read_b32 %s, %s offset:%d' % (t, aEXr, off), 'ldsr', [aEXr, b], [t])
            self.valu('v_add_f32 %s, %s, %s' % (vL['s'], vL['s'], t), [vL['s'], t], [vL['s']])
            ls = [vL[x] for x in 'abs']
            self.valu('v_min3_f32 %s, %s, %s, %s' % (t, *ls), ls, [t])
            self.valu('v_cmp_gt_f32 %s, %s, %s' % (sCMP, sLO, t), [sLO, t], [sCMP])
            self.salu('s_or_b64 %s, %s, %s' % (sBAD, sBAD, sCMP), [sBAD, sCMP], [sBAD])
            self.valu('v_max3_f32 %s, %s, %s, %s' % (t, *ls), ls, [t])
            self.valu('v_cmp_lt_f32 %s, %s, %s' % (sCMP, sHI, t), [sHI, t], [sCMP])
            self.salu('s_or_b64 %s, %s, %s' % (sBAD, sBAD, sCMP), [sBAD, sCMP], [sBAD])
            for x in 'abs': self.p.add('v_rcp_f32 %s, %s' % (vL[x], vL[x]), 'trans', [vL[x]], [vL[x]])
            if h == 1:
                off2 = self.rot()
                self.salu('s_or_b32 %s, s46, s47' % sTMP, [sBAD], [sTMP])
                self.salu('s_andn2_b32 %s, %s, %s' % (sTMP, sTMP, sMODE), [sTMP, sMODE], [sTMP])
                self.valu('v_mov_b32 %s, %s' % (t, sTMP), [sTMP], [t])
                self.exwrite('ds_write_b32 %s, %s offset:%d' % (aEXw, t, off2), t, n7 + 1)
                def vote(b3):
                    t2 = vT[2]
                    self.vops(['v_bfe_u32 %s, %s, 4, 2' % (t2, vLIN), 'v_mul_u32_u24 %s, %d, %s' % (t2, EXW, t2), 'v_add_u32 %s, %d, %s' % (t2, EX + off2, t2)])
                    self.p.add('ds_read_b32 %s, %s' % (t2, t2), 'ldsr', [t2, b3], [t2])
                    self.valu('v_cmp_ne_u32 vcc, 0, %s' % t2, [t2], ['vcc'])
                    self.p.add('s_cmp_lg_u64 vcc, 0\n    s_cbranch_scc1 L_restart', 'br', ['vcc'], ['OKGO'], mind={'vcc': 5})
                self.after_bar.setdefault(n7 + 1, []).append(vote)
        self.after_bar.setdefault(n7, []).append(fin)
    def pv(self, i, t, O, OB):
        P = self.P[i & 1]
        for dt in range(16):
            c = (dt >> 1) & 1
            f = [self.trread(t, aV[ks][c], lambda jj: jj * 512 + 128 * (dt >> 2) + 32 * (dt & 1)) for ks in range(2)]
            seq = [('a', 0), ('a', 1), ('b', 1), ('b', 0)] + ([('s', 0), ('s', 1)] if c == 0 else [])
            for k, (qt, ks) in enumerate(seq):
                A = O[qt][dt]
                self.mfma(A, f[ks], P[qt][ks], '0' if (i == 0 and k % 2 == 0) else A)
            if i == 7 and (dt & 1):
                for qt in (('s', 'a', 'b') if c == 0 else ('a', 'b')):
                    D = OB[qt][dt >> 1]
                    for jj in range(2):
                        A = O[qt][dt - 1 + jj]
                        if A[0] == 'a':
                            T = D if jj == 0 else list(NEGM.values())[self.tq % 3]
                            if jj: self.tq += 1
                            for e in range(4): self.valu('v_accvgpr_read_b32 %s, %s' % (reg(T, e), reg(A, e)), [reg(A, e)], [reg(T, e)])
                            A = T
                        for e in range(4): self.valu('v_mul_f32 %s, %s, %s' % (reg(A, e), vL[qt], reg(A, e)), [vL[qt], reg(A, e)], [reg(A, e)])
                        for e in range(2):
                            self.valu('v_cvt_pk_bf16_f32 %s, %s, %s' % (reg(D, 2 * jj + e), reg(A, 2 * e), reg(A, 2 * e + 1)),
                                      [reg(A, 2 * e), reg(A, 2 * e + 1)], [reg(D, 2 * jj + e)])
                    if qt == 's':
                        nb = self.nbar + self.osdelay
                        self.exchange(D, OB['s'][(dt >> 1) + 1], 2048 + (dt >> 2) * 1024, nb, nb)
    def hookop(self, h, Q, tmp):
        allq = [x for qt in 'sab' for x in Q[qt]]
        self.p.add('s_cmp_lg_u32 %s, 0\n    s_cbranch_scc1 L_hook%d\nL_ret%d:' % (sMODE, h, h), 'br', allq + [sMODE],
                   list(NEGM.values()) + list(vL.values()) + vT + SQ[:3] + tmp + [sTMP, sHK])
        for qt in 'sab': self.valu('v_mov_b32 %s, 0' % vL[qt], [], [vL[qt]])
    def otile(self, t, OB):
        h, m = t.arg; acc = self.oacc
        for nt in range(4):
            fr = [self.trread(t, aW[u & 1][nt >> 1], lambda jj, u=u: (u >> 1) * 8448 + jj * 256 + 8 * (nt & 1)) for u in range(8)]
            for qt in (('a', 'b', 's') if nt < 2 else ('a', 'b')):
                A = acc[(nt, qt)]
                for u in range(8): self.mfma(A, fr[u], OB[h][qt][u], '0' if (h == 0 and u == 0) else A)
                if h == 1:
                    D = acc[(nt & 2, qt)]
                    for e in range(2):
                        self.valu('v_cvt_pk_bf16_f32 %s, %s, %s' % (reg(D, 2 * (nt & 1) + e), reg(A, 2 * e), reg(A, 2 * e + 1)),
                                  [reg(A, 2 * e), reg(A, 2 * e + 1)], [reg(D, 2 * (nt & 1) + e)])
                    if nt & 1:
                        c = 5 * m + {'a': 0, 'b': 1, 's': 2}[qt] + 3 * (nt >> 1)
                        self.salu('s_mov_b32 %s, %d' % (sST, c * 8192), [], [sST])
                        self.p.add('buffer_store_dwordx4 %s, %s, %s, %s offen%s' % (D, vP, sWS, sST, self.o.stflag), 'vst',
                                   [D, vP, sST, 'OKGO'], ['PST%d' % c], due=self.p.nm + 10)
    def out_addr(self):
        t0 = vT[0]
        self.lane(t0)
        self.vops(['v_lshlrev_b32 %s, 4, %s' % (vC, t0), 's_lshl_b32 %s, %s, 10' % (sTMP, sJ), 'v_add_u32 %s, %s, %s' % (vP, sTMP, vC),
                   'v_and_b32 %s, 15, %s' % (vO, t0), 'v_mul_u32_u24 %s, 1792, %s' % (vO, vO), 'v_lshlrev_b32 %s, 2, %s' % (vF, t0),
                   'v_and_b32 %s, 48, %s' % (t0, t0), 'v_add_u32 %s, %s, %s' % (vO, vO, t0)])
        for r in range(5):
            d = sJOB[r]
            txt = ['s_add_u32 {d}, {j}, %d' % (8 * r), 's_mul_i32 {t}, {d}, 52', 's_lshr_b32 {t}, {t}, 8', 's_mul_i32 {u}, {t}, 5',
                   's_sub_u32 {u}, {d}, {u}', 's_lshl_b32 {t}, {t}, 7', 's_cmp_ge_u32 {d}, 35', 's_cselect_b32 {d}, 0x40000000, {ob}',
                   's_add_u32 {d}, {d}, {t}', 's_cmp_ge_u32 {u}, 3', 's_cselect_b32 {t}, 1, 0', 's_cselect_b32 {h}, 3, 0', 's_sub_u32 {u}, {u}, {h}',
                   's_xor_b32 {t}, {t}, {par}', 's_lshl_b32 {t}, {t}, 6', 's_add_u32 {d}, {d}, {t}',
                   's_lshl_b32 {t}, {par}, 1', 's_add_u32 {t}, {t}, {u}', 's_cmp_eq_u32 {u}, 2', 's_cselect_b32 {t}, 4, {t}',
                   's_mul_i32 {t}, {t}, 28672', 's_add_u32 {d}, {d}, {t}']
            txt = [x.format(d=d, j=sJ, t=sTMP, u=sT2, h=sHK, ob=sOB, par=sPAR) for x in txt]
            k = 0
            while k < len(txt):
                n = 1
                if txt[k].startswith('s_cmp'):
                    while k + n < len(txt) and txt[k + n].startswith('s_cselect'): n += 1
                self.salu('\n    '.join(txt[k:k + n]), [d, sTMP, sT2, sHK], [d, sTMP, sT2, sHK]); k += n
    def publish(self, val, chunks, soft, nb=None):
        t = vT[1]
        self.valu('v_mov_b32 %s, %d' % (t, val), [], [t])
        self.vops(['v_lshlrev_b32 %s, 2, %s' % (vT[2], vC), 's_lshl_b32 %s, %s, 2' % (sTCH, sJ), 's_add_u32 %s, %s, %d' % (sTCH, sTCH, PREG)])
        self.p.add('buffer_store_dword %s, %s, %s, %s offen sc1' % (t, vT[2], sWS, sTCH), 'vst', [t, vT[2], sTCH, 'PUB'] + ['PST%d' % c for c in chunks],
                   [], soft=soft, nb=nb, due=nb)
    def poll(self, name, load, dst, check, nb, soft, rd):
        self.p.add(load, 'vld', rd, [dst, 'PUB'], nb=nb, due=nb)
        self.p.add(check + '\n    s_cbranch_scc0 L_spin%s\nL_back%s:' % (name, name), 'br', [dst] + list(rd), [dst, 'vcc', sHK, 'GO' + name], soft=soft,
                   due=None if nb is None else nb + soft)
        self.spins.append((name, load, check))
    def pollflags(self, name, val, nb, soft, rd=()):
        t = vT[0]
        self.salu('s_mov_b32 %s, %d' % (sT2, PREG), [], [sT2])
        self.poll(name, 'buffer_load_dword %s, %s, %s, %s offen sc1' % (t, vF, sWS, sT2), t,
                  'v_cmp_le_u32 vcc, %d, %s\n    s_nop 4\n    s_cmp_eq_u32 vcc_lo, 0xff' % (val, t), nb, soft, [vF, sT2] + list(rd))
    def jobload(self, r, L, go, nb=None, step=0):
        for jj in range(8):
            if jj % 4 == 0:
                so = self.soff()
                self.salu('s_lshl_b32 %s, %s, 13' % (so, sJ), [sJ], [so]); self.salu('s_add_u32 %s, %s, %d' % (so, so, r * 65536 + jj * 1024), [so], [so])
            pos = None if nb is None else nb + jj * step
            self.p.add('buffer_load_dwordx4 %s, %s, %s, %s offen offset:%d sc1' % (L[jj], vC, sWS, so, (jj & 3) * 1024), 'vld', [vC, so, go], [L[jj]], nb=pos, due=pos)
    def jobsum(self, r, L, T):
        A = [reg(T[0], e) for e in range(4)] + [reg(T[1], e) for e in range(4)]
        for jj in range(8):
            for e in range(4):
                src = reg(L[jj], e); t0, t1 = reg(T[2], (2 * e) & 3), reg(T[2], (2 * e + 1) & 3)
                if src[0] == 'a':
                    self.valu('v_accvgpr_read_b32 %s, %s' % (t1, src), [src], [t1]); src = t1
                if jj == 0: self.vops(['v_lshlrev_b32 %s, 16, %s' % (A[2 * e], src), 'v_and_b32 %s, 0xffff0000, %s' % (A[2 * e + 1], src)])
                else: self.vops(['v_lshlrev_b32 %s, 16, %s' % (t0, src), 'v_and_b32 %s, 0xffff0000, %s' % (t1, src),
                                 'v_add_f32 %s, %s, %s' % (A[2 * e], A[2 * e], t0), 'v_add_f32 %s, %s, %s' % (A[2 * e + 1], A[2 * e + 1], t1)])
        for e in range(4): self.vops(['v_cvt_pk_bf16_f32 %s, %s, %s' % (A[e], A[2 * e], A[2 * e + 1])])
        self.p.add('buffer_store_dwordx4 %s, %s, %s, %s offen' % (T[0], vO, sOUT, sJOB[r]), 'vst', [T[0], vO, sJOB[r]], [])
    def build(self):
        o = self.o
        W = [[Tile('wq%d_%d' % (h, k), 'wq', (h, k >> 1, k & 1)) for k in range(8)] for h in range(2)]
        def attn_tiles(h):
            l = [('k', 0)]
            for i in range(1, 8): l += [('k', i), ('v', i - 1)]
            return [Tile('%s%d_%d' % (k, h, i), k, (h, i)) for k, i in l + [('v', 7)]]
        A = [attn_tiles(h) for h in range(2)]
        WO = [Tile('wo%d_%d' % (m, h), 'wo', (h, m)) for m in range(7) for h in range(2)]
        def xt(name, p):
            return (Tile(name + 'A', 'x', [('a', p, 0), ('b', p, 1024), ('s', p, 5248), ('a', p + 1, 4224), ('s', p + 1, 7360)]),
                    Tile(name + 'B', 'x', [('b', p + 1, 0), ('a', p + 2, 1024), ('b', p + 2, 4224), ('s', p + 2, 5248)]))
        XA0, XB0 = xt('x0', 0); XA1, XB1 = xt('x1', 4); XA2, XB2 = xt('x2', 4)
        XE = Tile('xe', 'xe', [('a', 3, 2048), ('b', 3, 3072), ('s', 3, 6144)])
        self.P = [{'a': [PQ[5 * b], PQ[5 * b + 1]], 'b': [PQ[5 * b + 2], PQ[5 * b + 3]], 's': [PQ[5 * b + 4], PX[b]]} for b in range(2)]
        self.qacc = dict(zip([(0, 's'), (0, 'a'), (0, 'b'), (1, 's'), (1, 'a'), (1, 'b'), (2, 'a'), (2, 'b'), (3, 'a'), (3, 'b')], PQ))
        self.oacc = dict(zip([(0, 'a'), (0, 'b'), (0, 's'), (1, 'a'), (1, 'b'), (1, 's'), (2, 'a'), (2, 'b'), (3, 'a'), (3, 'b')], PQ))
        def xmap(lst): return {qt: [lst[3 * ks + k] for ks in range(14)] for k, qt in enumerate('sab')}
        X0 = xmap(ABIG[:18] + BIG[:24]); X1 = xmap(ABIG)
        Q0 = {qt: ABIG[18 + 8 * k: 26 + 8 * k] for k, qt in enumerate('sab')}
        def omap(lst):
            O = {'a': [None] * 16, 'b': [None] * 16, 's': [None] * 16}; k = 0
            for u in range(8):
                for qt in (('s', 'a', 'b') if u % 2 == 0 else ('a', 'b')):
                    O[qt][2 * u] = lst[k]; O[qt][2 * u + 1] = lst[k + 1]; k += 2
            return O
        O0 = omap(BIG); O1 = omap(ABIG[:40])
        OB0 = {qt: [O0[qt][2 * u] for u in range(8)] for qt in 'sab'}
        Q1 = {qt: [O0[qt][2 * u + 1] for u in range(8)] for qt in 'sab'}
        for u in range(1, 8, 2): OB0['s'][u] = OPART0[u >> 1]; Q1['s'][u] = QPART1[u >> 1]
        OB1 = Q1
        self.maps = dict(Q0=Q0, Q1=Q1)
        QB = [2, 26]
        self.touch_plan = {}
        for h in range(2):
            for (at, tile) in o.touch:
                self.touch_plan.setdefault(QB[h] + int(at // 1), []).append((A[h][tile], int((at % 1) * 70) + 5))
        if o.wtouch & 2:
            self.touch_plan.setdefault(QB[1] - 4, []).append((('wq', (1, 0, 2)), 68))
        if o.wtouch & 4:
            for k, (at, dg) in enumerate(((-4, 68), (0, 10), (4, 10))):
                self.touch_plan.setdefault(QB[1] + 24 + at, []).append((('wo', (1 + 2 * k, 1)), dg))
        if o.wtouch & 1:
            self.ctouch('x', (0, 3), None, 'PRE'); self.ctouch('wq', (0, 0, o.wt0), None, 'PRE')
        for t, s in ((XA0, 0), (XB0, 2), (W[0][0], 1), (XE, None), (XA1, 3)):
            t.slot = s; self.dma(t, 'PRE', -100, 0)
        if (o.wtouch & 1) and o.wt0 < 2: self.ctouch('wq', (0, 1 << o.wt0, 2), None, 'PRE')
        self.x_addr()
        self.setfr(FR + SQ + PX)
        self.bar(ready=[XA0, XB0, W[0][0]])
        self.xread(XA0, X0); self.xread(XB0, X0)
        self.bar(free=[XA0, XB0], issue=[(W[0][1], 0), (XB1, 2)], span=24, lead=0, waitregs=ABIG[:18])
        def mid0():
            self.bar(ready=[XE, XA1]); self.xread(XE, X0); self.xread(XA1, X0)
        self.qtile(W[0][0], X0, Q0, {2: mid0})
        self.bar(ready=[W[0][1], XB1], free=[W[0][0], XA1], issue=[(W[0][2], 1), (W[0][3], 3)], span=40)
        self.xread(XB1, X0)
        self.qtile(W[0][1], X0, Q0)
        self.bar(ready=[W[0][2]], free=[W[0][1], XB1], issue=[(W[0][4], 0), (W[0][5], 2)], span=50)
        self.k_addr()
        self.vops(['v_mov_b32 %s, 0' % vT[1], 'v_bfe_u32 %s, %s, 4, 6' % (vT[2], vLIN), 'v_lshlrev_b32 %s, 6, %s' % (vT[2], vT[2]),
                   's_lshl_b32 %s, %s, 2' % (sTCH, sJ), 's_add_u32 %s, %s, %d' % (sTCH, sTCH, PREG)])
        self.p.add('buffer_store_dword %s, %s, %s, %s offen sc1' % (vT[1], vT[2], sWS, sTCH), 'vst', [vT[1], vT[2], sTCH], ['FLAG0'], due=self.p.nm + 30)
        self.bar_ex.setdefault(QB[0] + 10, []).append('FLAG0')
        def announce(b):
            self.valu('v_mov_b32 %s, 1' % vT[1], [], [vT[1]])
            self.p.add('buffer_store_byte %s, %s, %s, %s offen sc1' % (vT[1], vTOUCH, sDBG, sJ), 'vst', [vT[1], vTOUCH, sJ, b], [], due=self.p.nm + 40)
        self.after_bar.setdefault(QB[0] + 10, []).append(announce)
        self.qtile(W[0][2], X0, Q0)
        def stream(seq, k):
            self.bar(ready=[seq[k]], free=[seq[k - 1]], issue=[(seq[k + 3], seq[k - 1].slot)] if k + 3 < len(seq) else [])
        def attention(h, seq, k0, Q, O, OB, tmp, tail):
            stream(seq, k0)
            self.setfr(FR)
            self.hookop(h, Q, tmp)
            self.stamp()
            self.qk(0, seq[k0], Q, self.nbar)
            k = k0 + 1
            for i in range(1, 8):
                stream(seq, k); self.qk(i, seq[k], Q, self.nbar + (1 if i < 7 else 0)); k += 1
                stream(seq, k)
                if i == 7:
                    self.lfinish(h, 'B%d' % (self.nbar - 1)); tail(0)
                self.pv(i - 1, seq[k], O, OB); k += 1
            tail(1)
            self.pv(7, seq[k], O, OB)
            self.stamp()
        seq0 = W[0] + A[0] + [XA2, XB2]
        for k in range(3, 8):
            stream(seq0, k); self.qtile(W[0][k], X0, Q0)
        V6, V7 = A[0][14], A[0][15]
        def tail0(st):
            if st == 0:
                self.x_addr(); self.xread(XE, X1)
            else:
                self.bar(ready=[V7, XA2], free=[V6, XE], issue=[(W[1][0], V6.slot)], span=30); self.xread(XA2, X1)
        self.osdelay = 2
        attention(0, seq0, 8, Q0, O0, OB0, BIG[:8], tail0)
        self.setfr(FR + SQ + PX)
        self.bar(ready=[W[1][0], XB2], free=[V7, XA2], issue=[(W[1][1], XA2.slot), (W[1][2], V7.slot)], span=40)
        self.xread(XB2, X1)
        self.qtile(W[1][0], X1, Q1)
        self.bar(ready=[W[1][1]], free=[W[1][0], XB2], issue=[(W[1][3], W[1][0].slot), (W[1][4], XB2.slot)], span=60)
        self.k_addr()
        self.qtile(W[1][1], X1, Q1)
        seq1 = W[1] + A[1] + WO
        for k in range(2, 8):
            stream(seq1, k); self.qtile(W[1][k], X1, Q1)
        def tail1(st):
            if st == 0: self.out_addr()
            else: stream(seq1, 23)
        self.osdelay = 1
        attention(1, seq1, 8, Q1, O1, OB1, ABIG[:8], tail1)
        self.setfr(FR + SQ + PX)
        LA = [ABIG[8 * r: 8 * r + 8] for r in range(3)]
        for k in range(14):
            stream(seq1, 24 + k)
            g = self.p.nm
            if k == 3:
                d = half(NEGM['a'], 0)
                self.poll('R', 'buffer_load_dwordx2 %s, off, %s, 0 sc1' % (d, sDBG), d,
                          'v_and_b32 %s, %s, %s\n    v_cmp_eq_u32 vcc, 0x01010101, %s\n    s_nop 4\n    s_cmp_eq_u32 vcc_lo, -1' % (reg(d, 0), reg(d, 0), reg(d, 1), reg(d, 0)),
                          g + 10, 100, [])
            if k == 10: self.publish(1, range(24), o.pub_soft, g + o.pub_at)
            if k == 12:
                self.pollflags('A', 1, g + o.poll_at, o.poll_soft, ['GOR'])
                for r in range(3): self.jobload(r, LA[r], 'GOA', g + o.poll_at + o.poll_soft + 2 + 32 * r, 4)
            self.otile(WO[k], [OB0, OB1])
        self.stamp()
        T3 = list(NEGM.values())
        self.jobsum(0, LA[0], T3)
        self.publish(2, range(24, 35), 0)
        self.jobsum(1, LA[1], BIG[0:3]); self.jobsum(2, LA[2], BIG[3:6])
        self.pollflags('B', 2, None, 0)
        self.jobload(3, BIG[8:16], 'GOB'); self.jobload(4, BIG[16:24], 'GOB')
        self.jobsum(3, BIG[8:16], BIG[24:27]); self.jobsum(4, BIG[16:24], BIG[27:30])
        assert not self.bar_ex and not self.after_bar and not self.touch_plan, (self.bar_ex, self.after_bar.keys(), self.touch_plan.keys())
        return self.p.schedule()
    def hook(self, h):
        Q = self.maps['Q%d' % h]; F = BIG[:8] if h == 0 else ABIG[:8]
        a = Asm(); t0, t1, t2 = vT
        a.label('L_hook%d' % h)
        a('v_bfe_u32 %s, %s, 4, 6' % (t2, vLIN))
        a('v_and_b32 %s, 15, %s\nv_lshlrev_b32 %s, 9, %s' % (t0, t2, t0, t0))
        a('v_and_b32 %s, 48, %s\nv_add_u32 %s, %s, %s' % (t2, t2, t0, t0, t2))
        a('s_lshl_b32 %s, %s, 6' % (sTMP, sPAR))
        a('v_add_u32 %s, %s, %s\nv_xor_b32 %s, 64, %s' % (t0, sTMP, t0, t1, t0))
        for qt in 'sab': a('v_mov_b32 %s, 0xff800000' % vL[qt])
        a('s_mov_b32 %s, %d' % (sHK, h * 262144))
        a.label('L_hookloop%d' % h)
        for t in range(8): a('buffer_load_dwordx4 %s, %s, %s, %s offen offset:%d' % (F[t], (t0, t1)[t & 1], sK, sHK, 128 * (t >> 1)))
        a('s_waitcnt vmcnt(0)')
        for k, qt in enumerate('sab'):
            for t in range(8): a('v_mfma_f32_16x16x32_bf16 %s, %s, %s, %s' % (SQ[k], F[t], Q[qt][t], '0' if t == 0 else SQ[k]))
        a('s_nop 7\ns_nop 1')
        for k, qt in enumerate('sab'):
            a('v_max3_f32 %s, %s, %s, %s' % (vL[qt], vL[qt], reg(SQ[k], 0), reg(SQ[k], 1)))
            a('v_max3_f32 %s, %s, %s, %s' % (vL[qt], vL[qt], reg(SQ[k], 2), reg(SQ[k], 3)))
        a('s_add_u32 %s, %s, 8192\ns_cmp_lt_u32 %s, %d\ns_cbranch_scc1 L_hookloop%d' % (sHK, sHK, sHK, (h + 1) * 262144, h))
        for qt in 'sab':
            for sw in ('32', '16'):
                a('v_mov_b32 %s, %s\ns_nop 1\nv_permlane%s_swap_b32 %s, %s\ns_nop 1\nv_max_f32 %s, %s, %s' % (t2, vL[qt], sw, vL[qt], t2, vL[qt], vL[qt], t2))
            for e in range(4): a('v_sub_f32 %s, 0, %s' % (reg(NEGM[qt], e), vL[qt]))
        a('s_nop 2\ns_branch L_ret%d' % h)
        return a.text()
    def spincode(self):
        a = Asm()
        for name, load, check in self.spins:
            a.label('L_spin' + name)
            a('s_mov_b32 %s, 0x40000' % sHK)
            a.label('L_spinloop' + name)
            a(load); a('s_waitcnt vmcnt(0)'); a(check)
            a('s_cbranch_scc1 L_back%s\ns_sub_u32 %s, %s, 1\ns_cmp_lg_u32 %s, 0\ns_cbranch_scc1 L_spinloop%s\ns_branch L_back%s' % (name, sHK, sHK, sHK, name, name))
        return a.text()

def prologue(o):
    a = Asm()
    a("""
    s_cmp_ge_u32 s2, 256
    s_cbranch_scc1 L_end
    EARLY_TOUCH
    s_and_b32 s61, s2, 7
    s_lshr_b32 s62, s2, 3
    s_lshr_b32 s63, s61, 2
    s_mul_i32 s50, s63, 40
    s_add_u32 s56, s0, s50
    s_addc_u32 s57, s1, 0
    s_load_dwordx2 s[8:9], s[56:57], 0
    s_load_dwordx2 s[20:21], s[56:57], 24
    s_load_dwordx2 s[12:13], s[56:57], 8
    s_load_dwordx2 s[16:17], s[56:57], 16
    s_load_dwordx2 s[24:25], s[56:57], 32
    s_load_dwordx2 s[28:29], s[0:1], 96
    s_load_dwordx2 s[4:5], s[0:1], 80
    s_load_dwordx2 s[96:97], s[0:1], 88
    """)
    if o.stamps == 1: a('s_memrealtime s[64:65]\ns_memtime s[66:67]')
    if o.stamps == 2: a('s_memtime s[64:65]')
    if o.map == 'B': a('s_and_b32 s38, s61, 3\ns_lshl_b32 s38, s38, 1\ns_and_b32 s50, s62, 1\ns_add_u32 s38, s38, s50\ns_lshr_b32 s60, s62, 1')
    if o.map == 'C': a('s_and_b32 s38, s61, 1\ns_lshl_b32 s38, s38, 2\ns_and_b32 s50, s62, 3\ns_add_u32 s38, s38, s50\ns_and_b32 s60, s61, 2\ns_lshl_b32 s60, s60, 2\ns_lshr_b32 s50, s62, 2\ns_add_u32 s60, s60, s50')
    if o.map == 'A': a('s_and_b32 s38, s62, 7\ns_and_b32 s60, s61, 3\ns_lshl_b32 s60, s60, 2\ns_lshr_b32 s50, s62, 3\ns_add_u32 s60, s60, s50')
    nx, nw = {'A': (8, 4), 'B': (2, 16), 'C': (4, 8)}[o.map]
    a('s_and_b32 s61, s38, %d\ns_and_b32 s62, s60, %d' % (nx - 1, nw - 1))
    a("""
    v_lshrrev_b32 v21, 6, v0
    v_lshlrev_b32 v15, 7, v0
    v_readfirstlane_b32 s32, v21
    v_and_b32 v21, 63, v0
    s_mov_b32 s43, 0
    s_mov_b32 s10, 143360
    s_mov_b32 s11, 0x20000
    s_mov_b32 s14, 524288
    s_mov_b32 s15, 0x20000
    s_mov_b32 s18, 524288
    s_mov_b32 s19, 0x20000
    s_mov_b32 s23, 0x20000
    s_mov_b32 s26, 458752
    s_mov_b32 s27, 0x20000
    s_mov_b32 s31, 0x20000
    s_mov_b32 s6, 4587520
    s_mov_b32 s7, 0x20000
    s_mov_b32 s98, 16
    s_mov_b32 s99, 0x20000
    s_and_b32 s33, s32, 1
    s_mul_i32 s34, s32, 8448
    s_lshr_b32 s59, s32, 1
    s_lshl_b32 s35, s32, 10
    s_lshl_b32 s50, s33, 3
    s_add_u32 s35, s35, s50
    s_lshl_b32 s50, s59, 6
    s_add_u32 s35, s35, s50
    s_lshl_b32 s50, s33, 6
    s_add_u32 s39, s34, s50
    s_mul_i32 s37, s59, 71680
    s_mul_i32 s36, s33, 28672
    s_add_u32 s36, s36, s37
    s_mul_i32 s50, s33, 7168
    s_add_u32 s37, s37, s50
    s_add_u32 s37, s37, 57344
    s_lshl_b32 s50, s32, 13
    v_lshl_add_u32 v12, v21, 4, s50
    v_lshrrev_b32 v22, 3, v21
    v_mul_u32_u24 v14, 896, v22
    v_lshrrev_b32 v22, 4, v21
    v_and_b32 v23, 7, v21
    v_xor_b32 v22, v22, v23
    v_lshl_add_u32 v14, v22, 4, v14
    """)
    a('s_mov_b32 s30, %d\ns_mul_i32 s3, s32, %d\ns_add_u32 s3, s3, %d' % (PREG + 32, EXW, EX))
    a('s_mov_b32 %s, 0x%x\ns_mov_b32 %s, 0x%x\ns_mov_b32 %s, 0x%x' % (sSCALE, SCALE, sLO, (127 - 30) << 23, sHI, (127 + 30) << 23))
    a("""
    s_mul_i32 s100, s60, 10
    s_mul_i32 s50, s59, 5
    s_add_u32 s100, s100, s50
    s_mul_i32 s100, s100, 28672
    s_mul_i32 s50, s63, 896
    s_add_u32 s100, s100, s50
    s_waitcnt lgkmcnt(0)
    s_mul_i32 s50, s60, 143360
    s_add_u32 s8, s8, s50
    s_addc_u32 s9, s9, 0
    s_lshl_b32 s50, s38, 10
    s_add_u32 s20, s20, s50
    s_addc_u32 s21, s21, 0
    s_sub_u32 s22, 3670016, s50
    s_lshl_b32 s58, s60, 3
    s_add_u32 s58, s58, s38
    KVOFF
    s_add_u32 s12, s12, s50
    s_addc_u32 s13, s13, 0
    s_add_u32 s16, s16, s50
    s_addc_u32 s17, s17, 0
    s_mul_i32 s50, s38, 458752
    s_add_u32 s24, s24, s50
    s_addc_u32 s25, s25, 0
    s_lshl_b32 s58, s63, 4
    s_add_u32 s58, s58, s60
    s_lshl_b32 s50, s58, 3
    s_add_u32 s96, s96, s50
    s_addc_u32 s97, s97, 0
    s_lshl_b32 s58, s58, 2
    s_add_u32 s58, s58, s32
    """)
    a('s_mul_i32 s50, s58, %d\ns_add_u32 s28, s28, s50\ns_addc_u32 s29, s29, 0' % PSTRIDE)
    a.label('L_start')
    a("""
    s_mov_b64 s[46:47], 0
    v_bfe_u32 v21, v12, 4, 6
    v_bfe_u32 v13, v21, 5, 1
    v_lshlrev_b32 v13, 4, v13
    v_bfe_u32 v23, v21, 4, 1
    v_lshl_add_u32 v13, v23, 2, v13
    v_bfe_u32 v23, v21, 3, 1
    v_add_u32 v13, v13, v23
    s_lshr_b32 s101, s32, 1
    s_lshl_b32 s101, s101, 3
    s_lshl_b32 s50, s33, 1
    s_add_u32 s101, s101, s50
    v_add_u32 v13, s101, v13
    v_lshlrev_b32 v13, 13, v13
    v_and_b32 v23, 7, v21
    v_lshl_add_u32 v13, v23, 4, v13
    """)
    t = a.text()
    et = 's_getpc_b64 s[54:55]\n    v_lshrrev_b32 v15, 1, v0\n    v_lshlrev_b32 v15, 7, v15\n    global_load_dword a252, v15, s[54:55]' if o.early else ''
    t = t.replace('EARLY_TOUCH', et).replace('KVOFF', 's_mov_b32 s50, 0' if o.fakekv else 's_lshl_b32 s50, s58, 19')
    if o.rot: t = t.replace('L_start:', '    s_lshr_b32 s63, s2, 3\n    s_mul_i32 s63, s63, %d\n    s_lshl_b32 s63, s63, 15\nL_start:' % o.rot)
    if o.pstamp:
        t = t.replace('    s_waitcnt lgkmcnt(0)\n    s_mul_i32 s50, s60, 143360', '    s_memtime s[66:67]\n    s_waitcnt lgkmcnt(0)\n    s_memtime s[68:69]\n    s_mul_i32 s50, s60, 143360')
        t += '    s_memtime s[70:71]\n'
    return t

def prologue2():
    return ["v_bfe_u32 v21, v12, 4, 6",
            "v_lshrrev_b32 v23, 2, v21", "v_mul_u32_u24 v4, 1056, v23", "v_and_b32 v22, 3, v21", "v_lshl_add_u32 v4, v22, 3, v4",
            "s_mul_i32 s101, s33, 16960", "s_mul_i32 s50, s33, 16832", "s_add_u32 s50, s50, 64", "v_add_u32 v5, s50, v4",
            "s_sub_u32 s50, 16960, s50", "v_add_u32 v6, s50, v4", "s_sub_u32 s50, 16960, s101", "v_add_u32 v7, s50, v4", "v_add_u32 v4, s101, v4",
            "v_bfe_u32 v23, v21, 3, 1", "v_mul_u32_u24 v8, 1032, v23", "v_bfe_u32 v23, v21, 4, 1", "v_mul_u32_u24 v23, 2112, v23", "v_add_u32 v8, v8, v23",
            "v_bfe_u32 v23, v21, 2, 1", "v_lshl_add_u32 v8, v23, 7, v8", "v_bfe_u32 v23, v21, 5, 1", "v_lshl_add_u32 v8, v23, 9, v8",
            "v_lshl_add_u32 v8, v22, 4, v8", "s_lshl_b32 s101, s33, 6", "s_sub_u32 s50, 64, s101", "v_add_u32 v9, s50, v8", "v_add_u32 v8, s101, v8",
            "v_lshl_add_u32 v16, v21, 4, s3", "s_xor_b32 s50, s32, 1", "s_mul_i32 s50, s50, %d" % EXW, "s_add_u32 s50, s50, %d" % EX,
            "v_lshl_add_u32 v17, v21, 4, s50"] + ["v_mov_b32 v%d, 0" % i for i in range(24, 36)]

def main(argv):
    ap = argparse.ArgumentParser()
    ap.add_argument('-o', default='k.s')
    ap.add_argument('--map', default='B')
    ap.add_argument('--stamps', type=int, default=0)
    ap.add_argument('--stiles', default='0:60:4')
    ap.add_argument('--lat_lds', type=float, default=7)
    ap.add_argument('--lat_vm', type=float, default=40)
    ap.add_argument('--late', type=float, default=1)
    ap.add_argument('--dma_span', type=float, default=60)
    ap.add_argument('--dma_lead', type=float, default=0)
    ap.add_argument('--kvflag', default=' nt')
    ap.add_argument('--wflag', default='')
    ap.add_argument('--xflag', default='')
    ap.add_argument('--codetouch', type=int, default=3)
    ap.add_argument('--ct_lead', type=int, default=6144)
    ap.add_argument('--wtouch', type=int, default=6)
    ap.add_argument('--touch', default='')
    ap.add_argument('--pub_at', type=int, default=70)
    ap.add_argument('--pub_soft', type=int, default=50)
    ap.add_argument('--poll_at', type=int, default=-10)
    ap.add_argument('--poll_soft', type=int, default=50)
    ap.add_argument('-v', action='store_true')
    ap.add_argument('--dbg_lo', type=int, default=0)
    ap.add_argument('--dbg_hi', type=int, default=6)
    ap.add_argument('--rep', type=int, default=1)
    ap.add_argument('--dbgstamp', type=int, default=0)
    ap.add_argument('--fakekv', type=int, default=0)
    ap.add_argument('--rot', type=int, default=0)
    ap.add_argument('--wt_lead', type=int, default=6)
    ap.add_argument('--wt0', type=int, default=2)
    ap.add_argument('--early', type=int, default=1)
    ap.add_argument('--pstamp', type=int, default=0)
    ap.add_argument('--stflag', default='sc1')
    o = ap.parse_args(argv)
    for k in ('kvflag', 'wflag', 'xflag', 'stflag'):
        v = getattr(o, k).strip().replace('+', ' ')
        setattr(o, k, (' ' + v) if v and v != 'none' else '')
    o.touch = [(float(x.split(':')[0]), int(x.split(':')[1])) for x in o.touch.split(',') if x]
    o.stiles = list(range(*map(int, o.stiles.split(':'))))[:14]
    g = Gen(o)
    if o.pstamp: g.nstamp = 4; o.stiles = o.stiles[:10]
    xa = g.x_addr
    def first_x():
        if o.pstamp: g.salu('s_memtime s[72:73]', ['PRE', 'm0'], ['STAMP'])
        g.vops(prologue2()); g.x_addr = xa; xa()
    g.x_addr = first_x
    out = g.build()
    body = prologue(o)
    body += ''.join('    ' + t + '\n' for t, k in out)
    a = Asm()
    if o.stamps:
        w = 4 if o.stamps == 1 else 2
        k = STAMP0 + w + w * g.nstamp; ns = g.nstamp + 2
        a('s_waitcnt vmcnt(0)')
        a('s_memrealtime s[%d:%d]\ns_memtime s[%d:%d]' % (k, k + 1, k + 2, k + 3) if w == 4 else 's_memtime s[%d:%d]' % (k, k + 1))
        a('s_load_dwordx2 s[40:41], s[0:1], 96\ns_waitcnt lgkmcnt(0)\ns_cmp_lg_u32 s32, 0\ns_cbranch_scc1 L_end')
        a('s_mul_i32 s50, s2, %d\ns_add_u32 s50, s50, 280000000\nv_mov_b32 v8, s50' % (ns * 16))
        for s in range(ns):
            for j in range(4): a('v_mov_b32 v%d, s%d' % (4 + j, STAMP0 + w * s + (j % w)))
            a('global_store_dwordx4 v8, v[4:7], s[40:41] offset:%d\ns_nop 3' % (16 * s))
        if o.dbgstamp:
            a('s_cmp_lg_u32 s2, 0\ns_cbranch_scc1 L_end\ns_load_dwordx2 s[40:41], s[0:1], 88\ns_waitcnt lgkmcnt(0)\nv_mov_b32 v8, 0')
            for s in range(ns - 1):
                a('s_sub_u32 s50, s%d, s%d\nv_mov_b32 v4, s50\nglobal_store_dword v8, v4, s[40:41] offset:%d' % (STAMP0 + 4 * s + 4, STAMP0 + 4 * s, 4 * s))
                a('s_sub_u32 s50, s%d, s%d\nv_mov_b32 v5, s50\nglobal_store_dword v8, v5, s[40:41] offset:%d\ns_nop 3' % (STAMP0 + 4 * s + 6, STAMP0 + 4 * s + 2, 32 + 4 * s))
        if o.dbgstamp > 1:
            a('s_load_dwordx2 s[40:41], s[0:1], 96\ns_waitcnt lgkmcnt(0)\nv_mov_b32 v8, 279000000\nglobal_load_dword v9, v8, s[40:41] sc1\ns_waitcnt vmcnt(0)')
            a('v_readfirstlane_b32 s51, v9\nv_mov_b32 v9, 0x13572468\nglobal_store_dword v8, v9, s[40:41] sc1\ns_cmp_eq_u32 s51, 0x13572468\ns_cbranch_scc1 L_end')
            a('s_sub_u32 s50, s%d, s%d\ns_cmp_lt_u32 s50, %d\ns_cbranch_scc1 L_end' % (STAMP0 + 4 * o.dbg_hi, STAMP0 + 4 * o.dbg_lo, o.dbgstamp))
            for s in range(ns - 1):
                a('s_sub_u32 s50, s%d, s%d\nv_cvt_f32_u32 v%d, s50' % (STAMP0 + 4 * s + 4, STAMP0 + 4 * s, 10 + s))
            a('s_sub_u32 s50, s%d, s%d\nv_cvt_f32_u32 v16, s50' % (STAMP0 + 6, STAMP0 + 2))
            a('s_sub_u32 s50, s%d, s%d\nv_cvt_f32_u32 v17, s50' % (STAMP0 + 10, STAMP0 + 6))
            for s in range(4): a('v_cvt_pk_bf16_f32 v%d, v%d, v%d' % (20 + s, 10 + 2 * s, 11 + 2 * s))
            a('buffer_store_dwordx4 v[20:23], off, s[4:7], 0')
        print('stamps: use --stamps %d' % (2 * ns))
    a('L_end:\ns_endpgm')
    a('L_restart:\ns_waitcnt vmcnt(0) lgkmcnt(0)\ns_barrier\ns_mov_b32 %s, -1\ns_branch L_start' % sMODE)
    body += a.text() + g.spincode() + g.hook(0) + g.hook(1) + '    .fill 8192, 4, 0xBF800000\n'
    txt = build([dict(name=NAME + '_kernel', grid=256, block=256, lds=LDS_BYTES, body=body, vgpr=512, sgpr=102, accum=256)] * o.rep)
    open(o.o, 'w').write(txt)
    tot, costs = estimate(out)
    nm = g.p.nm
    print('mfma %d  est cycles %d (ideal %d)  forced ops %d  instrs %d  bytes %d' % (nm, tot, nm * 16, g.p.stats['forced'], len(out), len(txt)))
    bounds = [0, 560, 1840, 2400, 3680, 4800]
    print('phase overhead:', [sum(c - 16 for i, c in costs if lo <= i < hi) for lo, hi in zip(bounds, bounds[1:])])
    if o.v:
        print('forced:', g.p.stats['forced_gaps'])
        print('over:', [(i, c) for i, c in costs if c > 16])

if __name__ == '__main__':
    main(sys.argv[1:])
```

```python
MEMLD = ('ldsr', 'ldsw', 'vld', 'vst', 'dma')
LGKM = ('ldsr', 'ldsw')
VM = ('vld', 'vst', 'dma')
SCALAR = ('salu', 'bar', 'br')
EXCL = ('trans', 'vld', 'vst', 'dma', 'ldsw')

def R(s):
    if isinstance(s, (list, tuple)):
        out = []
        for x in s: out += R(x)
        return out
    if len(s) > 1 and s[0] in 'vas' and s[1] == '[':
        lo, hi = s[2:-1].split(':')
        return ['%s%d' % (s[0], i) for i in range(int(lo), int(hi) + 1)]
    return [s]

class Op:
    __slots__ = ('text', 'kind', 'rd', 'wr', 'srcc', 'idx', 'preds', 'succs', 'nb', 'due', 'alap', 'asap', 'pos', 'gap',
                 'done', 'npred', 'mi', 'cnt', 'soft', 'swap', 'mind', 'nsucc', 'lim', 'crit')
    def __init__(self, text, kind, rd, wr, srcc=(), nb=None, due=None, soft=None, swap=False, mind=None):
        self.text = text; self.kind = kind
        self.rd = R(rd); self.wr = R(wr); self.srcc = R(srcc)
        self.preds = []; self.succs = []
        self.mind = mind or {}; self.nb = nb; self.due = due; self.soft = soft; self.swap = swap
        self.pos = None; self.gap = None; self.done = False; self.mi = None; self.cnt = None

def isreg(r):
    return r[0] in 'va' and r[1:].isdigit()

class Prog:
    def __init__(self, lat_lds=7, lat_vm=40, late=1.0, vmsp=5):
        self.ops = []
        self.lastw = {}; self.readers = {}
        self.nm = 0
        self.lat_lds = lat_lds; self.lat_vm = lat_vm; self.late = late; self.vmsp = vmsp; self.barslack = 8; self.critwin = 12
    def add(self, text, kind, rd=(), wr=(), **kw):
        op = Op(text, kind, rd, wr, **kw)
        op.idx = len(self.ops)
        if kind == 'mfma':
            op.mi = self.nm; self.nm += 1
        deps = {}
        def dep(p, dist, wait):
            if p is op: return
            d = deps.get(p.idx)
            if d is None: deps[p.idx] = [p, dist, wait]
            else:
                d[1] = max(d[1], dist); d[2] = d[2] or wait
        isv = kind in ('valu', 'trans')
        for r in op.rd + op.srcc:
            p = self.lastw.get(r)
            if p is None: continue
            dist = 0; wait = p.kind in MEMLD
            pv = p.kind in ('valu', 'trans')
            if isreg(r):
                if p.kind == 'mfma':
                    if kind == 'mfma' and r in op.srcc and r not in op.rd:
                        dist = 0 if op.srcc == p.wr else 6
                    else: dist = 8
                elif pv:
                    if kind == 'mfma': dist = 2
                    elif op.swap: dist = 2
                    elif p.kind == 'trans' and not p.swap: dist = 1
                    elif op.text.startswith('v_readfirstlane') or op.text.startswith('v_readlane'): dist = 1
            elif r == 'm0':
                dist = 1
            elif (r[0] == 's' and r[1:].isdigit()) or r == 'vcc':
                if pv:
                    dist = 5 if kind in VM else (2 if isv else 1)
            dist = max(dist, op.mind.get(r, 0))
            dep(p, dist, wait)
        for r in op.wr:
            p = self.lastw.get(r)
            if p is not None:
                dist = 0; wait = p.kind in MEMLD and isreg(r)
                if isreg(r) and p.kind == 'mfma' and kind != 'mfma': dist = 8
                dep(p, dist, wait)
            for q in self.readers.get(r, ()):
                dist = 0
                if isreg(r):
                    if q.kind == 'mfma' and r in q.srcc and kind != 'mfma': dist = 3
                    if q.kind == 'vst': dist = 2
                dep(q, dist, False)
        for r in op.wr:
            self.lastw[r] = op; self.readers[r] = []
        for r in op.rd + op.srcc:
            if r not in op.wr: self.readers.setdefault(r, []).append(op)
        op.preds = list(deps.values())
        for p, dist, wait in op.preds: p.succs.append((op, dist, wait))
        self.ops.append(op)
        return op

    def edge_lat(self, p, s, dist, wait):
        if wait:
            if s.soft is not None and p.kind in LGKM: return s.soft
            return self.lat_lds if p.kind in LGKM else (s.soft if (s.soft is not None and s.kind != 'bar') else self.lat_vm)
        return dist / 2.6

    def priorities(self):
        ops = self.ops; NM = self.nm
        for op in ops:
            if op.kind == 'mfma': op.asap = float(op.mi); continue
            a = -50.0
            for p, dist, wait in op.preds:
                lat = dist / 2.6 if not wait else (2.0 if p.kind in LGKM else 0.0)
                a = max(a, p.asap + lat + (0.0 if p.kind == 'mfma' else 0.3))
            if op.nb is not None: a = max(a, op.nb)
            op.asap = a
        for op in ops:
            op.nsucc = sum(1 for s, d, w in op.succs if s.kind != 'mfma'); op.alap = None
            lim = NM + 200.0
            if op.kind != 'mfma':
                for s, dist, wait in op.succs:
                    if s.kind == 'mfma': lim = min(lim, s.mi - 1 - max(0.0, self.edge_lat(op, s, dist, wait) - (0.0 if wait else 0.8)))
                if op.due is not None: lim = min(lim, op.due)
            op.lim = lim
        pool = [o for o in ops if o.kind != 'mfma' and o.nsucc == 0]
        def place(o, g):
            o.alap = g
            pool.remove(o)
            for p, dist, wait in o.preds:
                if p.kind == 'mfma': continue
                lat = self.edge_lat(p, o, dist, wait)
                if p.kind in VM and wait and p.due is not None: lat = 0.0
                p.lim = min(p.lim, g - lat)
                p.nsucc -= 1
                if p.nsucc == 0: pool.append(p)
        g = NM + 200; lastvm = 10 ** 9
        while pool:
            g = min(g, int(max(o.lim for o in pool) // 1))
            vs = 2; lds = 1; sc = 1
            while True:
                c = [o for o in pool if o.lim >= g]
                if not c: break
                c.sort(key=lambda o: (o.kind not in VM, -o.asap, -o.idx))
                pick = None
                for o in c:
                    k = o.kind
                    must = o.asap >= g or g < -1 or g >= NM
                    if k == 'bar':
                        if (lds and vs == 2) or must: pick = o; vs = min(vs, 1); lds = 0; sc = 0; break
                    elif k in SCALAR:
                        if sc or must: pick = o; sc = 0; break
                    elif k in EXCL:
                        if k in VM and lastvm - g < self.vmsp and not must: continue
                        if vs == 2 or must:
                            pick = o; vs = 0; lds = 0
                            if k in VM: lastvm = g
                            break
                    elif k == 'ldsr':
                        if (lds and vs) or must: pick = o; vs = max(0, vs - 1); lds = 0; break
                    else:
                        if vs == 2 or must or (vs == 1 and (not lds or not any(x.kind == 'ldsr' for x in c))):
                            pick = o; vs = max(0, vs - 1); break
                if pick is None: break
                place(pick, g)
            g -= 1
        for op in ops:
            if op.kind == 'mfma': op.alap = float(op.mi)

    def schedule(self):
        ops = self.ops
        self.priorities()
        for op in reversed(ops):
            op.crit = op.kind in MEMLD or op.kind == 'bar' or any(s.kind != 'mfma' and s.crit and s.alap - op.alap < self.critwin for s, d, w in op.succs)
        out = []
        st = dict(n=0, lg=0, lgdone=0, vm=0, vmdone=0, gap=-1, vmgap=-100)
        for op in ops: op.npred = len(op.preds)
        ready = []
        def release(op):
            for s, dist, wait in op.succs:
                s.npred -= 1
                if s.npred == 0 and s.kind != 'mfma': ready.append(s)
        for op in ops:
            if op.npred == 0 and op.kind != 'mfma': ready.append(op)
        def emit_raw(text, kind, states=1):
            out.append((text, kind)); st['n'] += states
        def need_wait(oplist):
            lg = None; vm = None
            for op in oplist:
                for p, dist, wait in op.preds:
                    if not wait or not p.done: continue
                    if p.kind in LGKM:
                        if p.cnt > st['lgdone']: lg = max(lg or 0, p.cnt)
                    else:
                        if p.cnt > st['vmdone']: vm = max(vm or 0, p.cnt)
            return lg, vm
        def emit_wait(lg, vm):
            parts = []
            if vm is not None:
                n = min(63, st['vm'] - vm); parts.append('vmcnt(%d)' % n); st['vmdone'] = st['vm'] - n
            if lg is not None:
                n = min(15, st['lg'] - lg); parts.append('lgkmcnt(%d)' % n); st['lgdone'] = st['lg'] - n
            if parts: emit_raw('s_waitcnt ' + ' '.join(parts), 'wait')
        def dist_short(op, extra=0):
            sh = 0
            for p, dist, wait in op.preds:
                if dist: sh = max(sh, dist - (st['n'] + extra - p.pos - 1))
            return sh
        def emit(op):
            lg, vm = need_wait([op])
            if op.kind in LGKM and st['lg'] - st['lgdone'] >= 15: lg = max(lg or 0, st['lg'] - 12)
            emit_wait(lg, vm)
            sh = dist_short(op)
            if sh > 0: emit_raw('s_nop %d' % (sh - 1), 'nop', sh)
            op.pos = st['n']; op.gap = st['gap']; op.done = True
            if op.kind in LGKM: st['lg'] += 1; op.cnt = st['lg']
            if op.kind in VM: st['vm'] += 1; op.cnt = st['vm']; st['vmgap'] = st['gap']
            emit_raw(op.text, op.kind)
            if op.kind != 'mfma': ready.remove(op)
            release(op)
        def force(op, strict=False):
            todo = []; seen = set()
            stack = [op]
            while stack:
                o = stack.pop()
                for p, dist, wait in o.preds:
                    if not p.done and p.idx not in seen:
                        assert p.kind != 'mfma', ('mfma order violated', o.text, p.text)
                        seen.add(p.idx); todo.append(p); stack.append(p)
            todo.sort(key=lambda o: o.idx)
            while todo:
                pick = None
                if strict:
                    pick = next((o for o in todo[:4] if o.npred == 0 and dist_short(o) <= 0 and (o is todo[0] or (o.kind == 'valu' and need_wait([o]) == (None, None)))), todo[0])
                    emit(pick); todo.remove(pick); continue
                for o in todo:
                    if o.npred == 0 and dist_short(o) <= 0 and need_wait([o]) == (None, None): pick = o; break
                if pick is None:
                    for o in todo:
                        if o.npred == 0 and dist_short(o) <= 0: pick = o; break
                if pick is None:
                    for o in todo:
                        if o.npred == 0: pick = o; break
                emit(pick); todo.remove(pick)
            return len(seen)
        def ok(op, g):
            if op.nb is not None and g < op.nb: return False
            if dist_short(op) > 0: return False
            if op.kind == 'bar' and g < op.alap - self.barslack: return False
            if op.kind in VM and g - st['vmgap'] < self.vmsp: return False
            for p, dist, wait in op.preds:
                if wait:
                    done = p.cnt <= (st['lgdone'] if p.kind in LGKM else st['vmdone'])
                    if not done and g - p.gap < self.edge_lat(p, op, dist, wait) and op.alap > g: return False
            return True
        def lgfull(g):
            return st['lg'] - st['lgdone'] >= 15
        mf = [o for o in ops if o.kind == 'mfma']
        stats = dict(forced=0, forced_gaps=[])
        key = lambda o: (o.alap, o.idx)
        for i, m in enumerate(mf):
            nf = force(m)
            if nf and i > 0: stats['forced'] += nf; stats['forced_gaps'].append((i, nf))
            emit(m)
            st['gap'] = i
            nxt = mf[i + 1] if i + 1 < len(mf) else None
            if nxt is None: break
            cand = sorted((o for o in ready if ok(o, i)), key=key)
            vec = [o for o in cand if o.kind not in SCALAR]
            sca = [o for o in cand if o.kind in SCALAR]
            bar = next((o for o in sca if o.kind == 'bar'), None)
            prim = [o for o in vec if o.kind != 'valu']
            val = [o for o in vec if o.kind == 'valu']
            if bar is not None and (not prim or bar.alap <= prim[0].alap):
                lg, vm = need_wait([bar, nxt]); w = lg is not None or vm is not None
                emit_wait(lg, vm); emit(bar)
                left = 1 if w else 2
                for o in val:
                    if left and need_wait([o]) == (None, None) and dist_short(o) <= 0:
                        emit(o); left -= 1
                continue
            sca = [o for o in sca if o.kind != 'bar']
            chosen = []; slots = 2
            islate = lambda o: o.alap <= i - self.late
            if vec:
                first = prim[0] if prim else None
                if first is not None and first.kind != 'ldsr' and val and val[0].alap < first.alap and not islate(first):
                    first = next((o for o in prim if o.kind == 'ldsr'), None)
                if first is not None: chosen = [first]
                used = sum(2 if o.kind in EXCL else 1 for o in chosen)
                lateop = next((o for o in sorted(prim, key=lambda o: o.kind not in VM) if o not in chosen and (islate(o) or (o.kind in VM and o.alap <= i and used == 1)) and (o.crit or (o.kind == 'trans' and used == 1))
                               and not (o.kind in VM and any(x.kind in VM for x in chosen))), None)
                if lateop is not None:
                    chosen.append(lateop); used = 2
                for o in val:
                    if used < 2: chosen.append(o); used += 1
                    elif islate(o) and o.crit and used < 3 and o not in chosen: chosen.append(o); used += 1
                slots = max(0, 2 - used)
                chosen.sort(key=lambda o: (0 if o.kind == 'ldsr' else 1 if o.kind in MEMLD else 2))
            lg, vm = need_wait(chosen + [nxt])
            if any(o.kind in LGKM for o in chosen) and st['lg'] - max(st['lgdone'], lg or 0) >= 14: lg = max(lg or 0, st['lg'] - 12)
            if lg is not None or vm is not None:
                emit_wait(lg, vm)
                if sca and slots == 0 and chosen[-1].kind == 'valu' and sca[0].alap < chosen[-1].alap and sca[0].alap <= i + 1:
                    chosen.pop(); slots = 1
            elif sca:
                emit(sca.pop(0))
            for o in chosen:
                if dist_short(o) <= 0: emit(o)
                else: slots += 1
            while slots > 0:
                c2 = sorted((o for o in ready if o.kind in ('valu', 'salu', 'br') and ok(o, i) and need_wait([o]) == (None, None)), key=key)
                if not c2: break
                emit(c2[0]); slots -= 1
            c3 = [o for o in ready if o.kind in ('salu', 'br') and o.alap <= i - self.late - 1 and o.crit and out[-1][1] not in VM and ok(o, i) and need_wait([o]) == (None, None)]
            if c3: emit(min(c3, key=key))
        class Dummy: pass
        d = Dummy(); d.preds = [(o, 0, False) for o in ops if not o.done]; d.text = 'tail'
        force(d, True)
        self.out = out; self.stats = stats
        return out

def estimate(out, lds_lat=100):
    import re
    t = 0; tm = None; costs = []; mi = -1; prev = None
    lq = []
    for txt, k in out:
        if k == 'mfma':
            if tm is not None:
                t = max(t, tm + 16); costs.append((mi, t - tm))
            tm = t; mi += 1; t += 4; prev = k; continue
        if k == 'wait':
            m = re.search(r'lgkmcnt\((\d+)\)', txt)
            if m:
                n = int(m.group(1))
                if len(lq) > n: t = max(t, lq[len(lq) - n - 1])
            t += 4
        elif k in ('salu', 'bar', 'br'): t += 4 * len([l for l in txt.split('\n') if not l.endswith(':')])
        elif k == 'nop': t += 4 * (int(txt.split()[1]) + 1)
        else:
            if tm is not None: t = max(t, tm + 8)
            if k in MEMLD:
                if prev in ('valu', 'trans'): t += 8
                elif tm is not None and t > tm + 8 and prev in ('wait', 'salu', 'bar', 'br', 'nop'): t += 8
                elif prev == 'ldsr' and k == 'ldsr': t += 4
            if k in LGKM: lq.append(t + lds_lat)
            t += {'valu': 4, 'trans': 8, 'ldsr': 4, 'ldsw': 20, 'vld': 8, 'vst': 8, 'dma': 8}[k]
        prev = k
    return t, costs
```

```python
import sys, argparse, struct
from asmlib import *
from sched import Prog, estimate

SLOT = 33792; PAIR = 2 * SLOT
EX = 4 * SLOT; EXW = 7168
LDS_BYTES = 163840
SCALE = struct.unpack('<I', struct.pack('<f', 1.4426950408889634 / 16.0))[0]
PREG = 35 * 8192
PSTRIDE = PREG + 1024

def q(f, n): return '%s[%d:%d]' % (f, 4 * n, 4 * n + 3)
def VQ(n): return q('v', n)
def AQ(n): return q('a', n)
def reg(quad, i):
    f = quad[0]; lo = int(quad[2:-1].split(':')[0]); return '%s%d' % (f, lo + i)
def half(quad, h):
    f = quad[0]; lo = int(quad[2:-1].split(':')[0]) + 2 * h; return '%s[%d:%d]' % (f, lo, lo + 1)

aK = [['v0', 'v1'], ['v2', 'v3']]; aV = [['v4', 'v5'], ['v6', 'v7']]; aW = [['v8', 'v9'], ['v10', 'v11']]
aXab, aXs, aEab, aEs = 'v0', 'v1', 'v2', 'v3'
vP, vC, vO, vF = 'v0', 'v1', 'v2', 'v3'
vLIN, vWROW, vX, vTOUCH, aEXw, aEXr = 'v12', 'v13', 'v14', 'v15', 'v16', 'v17'
vL = {'a': 'v18', 'b': 'v19', 's': 'v20'}
vT = ['v21', 'v22', 'v23']
NEGM = {'a': VQ(6), 'b': VQ(7), 's': VQ(8)}
SQ = [VQ(9 + i) for i in range(5)]
PQ = [VQ(14 + i) for i in range(10)]
BIG = [VQ(24 + i) for i in range(40)]
FR = [AQ(i) for i in range(10)]
PX = [AQ(10), AQ(11)]
OPART0 = [AQ(12 + i) for i in range(4)]
QPART1 = [AQ(16 + i) for i in range(4)]
ABIG = [AQ(20 + i) for i in range(42)]
aTOUCH = 'a252'
sX, sK, sV, sWQ, sWO, sWS = 's[8:11]', 's[12:15]', 's[16:19]', 's[20:23]', 's[24:27]', 's[28:31]'
sW, sPAR, sW8448, sWPAD = 's32', 's33', 's34', 's35'
sXA, sXS, sJ = 's36', 's37', 's38'
sSOFF = ['s40', 's41']; sSCALE, sMODE, sLO, sHI = 's42', 's43', 's44', 's45'
sBAD = 's[46:47]'; sCMP = 's[48:49]'; sTMP = 's50'; sST = 's51'; sTCH = 's52'; sHK = 's53'
sPC = 's[54:55]'
sOUT, sDBG = 's[4:7]', 's[96:99]'
sXSM, sEXM = 's39', 's3'
sOB = 's100'; sT2 = 's101'; sSHX, sSHW = 's61', 's62'
sJOB = ['s56', 's57', 's58', 's59', 's60']
STAMP0 = 64

class Tile:
    def __init__(self, name, kind, arg): self.name, self.kind, self.arg = name, kind, arg; self.slot = None; self.nd = 0
    @property
    def tok(self): return 'T_' + self.name

class Gen:
    def __init__(self, o):
        self.o = o
        self.p = Prog(lat_lds=o.lat_lds, lat_vm=o.lat_vm, late=o.late, vmsp=o.vmsp)
        self.pair = {}
        self.frl = FR; self.fri = 0
        self.si = 0; self.soi = 0; self.exi = 0; self.exq = 0; self.tq = 0
        self.nbar = 0
        self.bar_ex = {}
        self.after_bar = {}
        self.nstamp = 0
        self.spins = []; self.kvhist = []
    def valu(self, t, rd, wr, **k): return self.p.add(t, 'valu', rd, wr, **k)
    def salu(self, t, rd, wr, **k): return self.p.add(t, 'salu', rd, wr, **k)
    def vops(self, lines):
        for l in lines:
            ops = [x.strip() for x in l.split(None, 1)[1].split(',')]
            rd = [x for x in ops[1:] if x[0] in 'vs' and x[1:].isdigit()]
            (self.salu if l.startswith('s_') else self.valu)(l, rd, [ops[0]])
    def mfma(self, d, a, b, c, extra=()):
        self.p.add('v_mfma_f32_16x16x32_bf16 %s, %s, %s, %s' % (d, a, b, c), 'mfma', [a, b] + list(extra), [d], srcc=([] if c == '0' else [c]))
    def frag(self):
        f = self.frl[self.fri % len(self.frl)]; self.fri += 1; return f
    def setfr(self, l):
        self.frl = l; self.fri = 0
    def base(self, r, t):
        pr = t.slot >> 1
        if self.pair.get(r, 0) != pr:
            self.valu(('v_add_u32 %s, %d, %s' if pr else 'v_subrev_u32 %s, %d, %s') % (r, PAIR, r), [r], [r])
            self.pair[r] = pr
        return (t.slot & 1) * SLOT
    def tstamp(self, n):
        o = self.o
        if o.stamps != 2 or n not in o.stiles: return ''
        k = STAMP0 + 2 + 2 * self.nstamp; self.nstamp += 1
        return '\n    s_memtime s[%d:%d]' % (k, k + 1)
    def stamp(self):
        if self.o.stamps != 1: return
        k = STAMP0 + 4 + 4 * self.nstamp; self.nstamp += 1
        self.salu('s_memrealtime s[%d:%d]\n    s_memtime s[%d:%d]' % (k, k + 1, k + 2, k + 3), [], ['STAMP'], nb=self.p.nm, due=self.p.nm)
    def soff(self):
        so = sSOFF[self.soi & 1]; self.soi += 1; return so
    def kvoff(self, h, i, extra):
        if self.o.fakekv == 2: return ('s_mov_b32 %s, ' + str(4096 + (i & 1) * 32768 + extra), [])
        if not self.o.rot: return ('s_mov_b32 %s, ' + str(h * 262144 + i * 32768 + extra), [])
        t = 's_add_u32 %%s, s63, %d|s_and_b32 %%s, %%s, 0x3ffff' % (i * 32768 + extra)
        if h: t += '|s_bitset1_b32 %s, 18'
        return (t, ['s63'])
    def pace(self, t, j):
        if t.kind not in ('k', 'v') or not self.o.pace: return None
        h, i = t.arg; k = {('k', 0): 0, ('k', 1): 1, ('v', 0): 2}.get((t.kind, i))
        if k is None: return None
        start, step = self.o.pace
        return (560, 2400)[h] + start + (8 * k + j) * step
    def dma(self, t, tok, g0, span):
        o = self.o; kind = t.kind
        slot = t.slot * SLOT if t.slot is not None else None
        items = []
        if kind in ('k', 'v'):
            h, i = t.arg
            for j in range(8):
                items.append((self.kvoff(h, i, (j >> 2) * 4096) if j % 4 == 0 else None,
                              (sW8448, slot + 32 * j + 4096 * (j >> 2)), vLIN, sK if kind == 'k' else sV, (j & 3) * 1024, o.kvflag))
        elif kind == 'wq':
            h, m, hf = t.arg
            for j in range(8 if hf else 6):
                items.append((('s_mov_b32 %s, ' + str((192 * hf + 32 * j) * 8192 + h * 512 + m * 128), []), (sWPAD, slot + 4224 * j), vWROW, sWQ, 0, o.wflag))
        elif kind == 'wo':
            h, m = t.arg
            for j in range(8):
                items.append((('s_mov_b32 %s, ' + str((h * 256 + 32 * j) * 896 + m * 128), []), (sWPAD, slot + 4224 * j), vWROW, sWO, 0, o.wflag))
        else:
            for (qt, p, pos) in t.arg:
                if kind == 'x': ab, sm, hs, b0 = sW8448, sXSM, 2112, slot
                else: ab, sm, hs, b0 = sEXM, sEXM, 2048, 0
                if qt == 's': items.append((('s_add_u32 %%s, %s, %d' % (sXS, 128 * p), [sXS]), (sm, b0 + pos), vX, sX, 0, o.xflag))
                else:
                    for hf in range(2):
                        items.append((('s_add_u32 %%s, %s, %d' % (sXA, 128 * p + 7168 * hf + (14336 if qt == 'b' else 0)), [sXA]),
                                      (ab, b0 + pos + hs * hf), vX, sX, 0, o.xflag))
        t.nd = len(items); so = None
        for j, (ss, (mb, mo), vo, srd, imm, fl) in enumerate(items):
            if ss is not None:
                so = self.soff()
                for l in ss[0].split('|'): self.salu(l.replace('%s', so), ss[1] + [so], [so])
            self.salu('s_add_u32 m0, %s, %d' % (mb, mo), [mb], ['m0'])
            fc = []
            if kind in ('k', 'v') and o.inflight:
                self.kvhist.append('D_%s_%d' % (t.name, j))
                if len(self.kvhist) > o.inflight: fc = [self.kvhist[-1 - o.inflight]]
            if kind in ('k', 'v') and o.mix < 8 and (j * o.mix) % 8 >= o.mix:
                srd = sX; fl = ''; so2 = so; so = '0'; self.p.add('buffer_load_dwordx4 %s, %s, 0 offen offset:%d lds' % (vo, srd, imm), 'dma', [vo, so2, 'm0', tok] + fc,
                       ['D_%s_%d' % (t.name, j)], nb=self.pace(t, j), due=max(self.pace(t, j) or -999, g0 + (j + 1) * span / len(items)), mind={tok: 6}, soft=0); so = so2
                continue
            self.p.add('buffer_load_dwordx4 %s, %s, %s offen offset:%d%s lds' % (vo, srd, so, imm, fl), 'dma', [vo, so, 'm0', tok] + fc,
                       ['D_%s_%d' % (t.name, j)], nb=self.pace(t, j), due=max(self.pace(t, j) or -999, g0 + (j + 1) * span / len(items)), mind={tok: (6 if tok != 'PRE' else 0)}, soft=0)
    def touch(self, t, nb, part=0, cls=None):
        h, i = t.arg
        for l in self.kvoff(h, i, 16384 if part == 2 else 0)[0].split('|'): self.salu(l.replace('%s', sTCH), [sTCH], [sTCH])
        if cls is not None:
            self.salu('s_bfe_u32 %s, s2, 0x%x\n    s_cmp_eq_u32 %s, %d\n    s_cselect_b32 %s, %s, 0x40000000' % (sST, (cls[1] << 16) | 3, sST, cls[0], sTCH, sTCH), [sTCH], [sTCH, sST])
        vo = vTOUCH
        if part:
            vo = vT[2]
            self.vops(['v_lshrrev_b32 %s, 8, %s' % (vo, vTOUCH), 'v_lshlrev_b32 %s, 7, %s' % (vo, vo)])
        self.p.add('buffer_load_dword %s, %s, %s, %s offen%s' % (aTOUCH, vo, sK if t.kind == 'k' else sV, sTCH, self.o.tflag), 'vld', [vo, sTCH], [], nb=nb, due=nb)
    def ctouch(self, kind, arg, nb, tok=None):
        o = self.o; nx, nw = {'A': (8, 4), 'B': (2, 16), 'C': (4, 8)}[o.map]
        t0, t1 = vT[1], vT[2]
        if kind == 'x':
            p0, lg = arg; rows = 160 // nx; stride = 896; srd = sX; fl = o.xflag; sh = sSHX; col0 = 128 * p0; ncol = min(1 << lg, 7 - p0); base = 0
        elif kind == 'wq':
            h, m0, lg = arg; rows = 448 // nw; stride = 8192; srd = sWQ; fl = o.wflag; sh = sSHW; col0 = 512 * h + 128 * m0; ncol = min(1 << lg, 4 - m0); base = 0
        else:
            m0, lg = arg; rows = 512 // nw; stride = 896; srd = sWO; fl = o.wflag; sh = sSHW; col0 = 128 * m0; ncol = min(1 << lg, 7 - m0); base = 0
        for r0 in range(0, rows, 256 >> lg):
            n = min(rows - r0, 256 >> lg)
            self.vops(['v_lshrrev_b32 %s, %d, %s' % (t0, 7 + lg, vTOUCH), 'v_bfe_u32 %s, %s, 7, %d' % (t1, vTOUCH, lg)])
            self.valu('v_cmp_gt_u32 vcc, %d, %s' % (n, t0), [t0], ['vcc'])
            self.vops(['v_mul_u32_u24 %s, %d, %s' % (t0, stride, t0), 'v_lshl_add_u32 %s, %s, 7, %s' % (t0, t1, t0)])
            self.valu('v_cndmask_b32 %s, 2.0, %s, vcc' % (t0, t0), [t0, 'vcc'], [t0])
            if ncol < (1 << lg):
                self.valu('v_cmp_gt_u32 vcc, %d, %s' % (ncol, t1), [t1], ['vcc'])
                self.valu('v_cndmask_b32 %s, 2.0, %s, vcc' % (t0, t0), [t0, 'vcc'], [t0])
            self.vops(['s_mul_i32 %s, %s, %d' % (sTCH, sh, rows * stride), 's_add_u32 %s, %s, %d' % (sTCH, sTCH, base + r0 * stride + col0)])
            self.p.add('buffer_load_dword %s, %s, %s, %s offen%s' % (aTOUCH, t0, srd, sTCH, fl), 'vld', [t0, sTCH] + ([tok] if tok else []), [], nb=nb, due=nb)
            if nb is not None: nb += 40
    def bar(self, ready=(), free=(), issue=(), span=None, lead=None, waitregs=(), nb=None):
        n = self.nbar; self.nbar += 1
        rd = ['D_%s_%d' % (t.name, j) for t in ready for j in range(t.nd)] + self.bar_ex.pop(n, []) + list(waitregs)
        wr = ['B%d' % n, 'B%d' % (n - 1), 'F%d' % n] + [t.tok for t in list(ready) + list(free)] + (['PRE'] if n == 0 else [])
        self.p.add('s_barrier' + self.tstamp(n), 'bar', rd, wr, soft=3, nb=nb)
        g = self.p.nm
        span = self.o.dma_span if span is None else span
        lead = self.o.dma_lead if lead is None else lead
        for k, (t, slot) in enumerate(issue):
            t.slot = slot
            self.dma(t, 'F%d' % n, g + lead + k * span / len(issue), span / len(issue))
        for (t, dg) in self.touch_plan.pop(n, []):
            if isinstance(t[0], str): self.ctouch(t[0], t[1], g + dg)
            else: self.touch(t[0], g + dg, t[1], t[2])
        if self.o.codetouch and n >= 4 and n % self.o.codetouch == 1:
            t = vT[2]
            self.vops(['v_lshrrev_b32 %s, 9, %s' % (t, vTOUCH), 'v_lshlrev_b32 %s, 7, %s' % (t, t), 'v_add_u32 %s, %d, %s' % (t, self.o.ct_lead, t)])
            self.salu('s_getpc_b64 s[54:55]', ['F%d' % n], [sPC], nb=g + 28, due=g + 28)
            self.p.add('global_load_dword %s, %s, %s' % (aTOUCH, t, sPC), 'vld', [t, sPC], [], nb=g + 30, due=g + 30)
        for cb in self.after_bar.pop(n, []): cb('B%d' % n)
        return n
    def exwrite(self, text, src, wbar):
        tok = 'EX%d' % self.exi; self.exi += 1
        self.p.add(text, 'ldsw', [aEXw, src], [tok])
        self.bar_ex.setdefault(wbar, []).append(tok)
    def exchange(self, src, dst, off, wbar, rbar):
        self.exwrite('ds_write_b128 %s, %s offset:%d' % (aEXw, src, off), src, wbar)
        self.after_bar.setdefault(rbar, []).append(
            lambda b: self.p.add('ds_read_b128 %s, %s offset:%d' % (dst, aEXr, off), 'ldsr', [aEXr, b], [dst]))
    def rot(self):
        r = (self.exq & 1) * 1024; self.exq += 1; return r
    def trread(self, t, r, imm):
        f = self.frag(); b = self.base(r, t)
        for jj in range(2):
            self.p.add('ds_read_b64_tr_b16 %s, %s offset:%d' % (half(f, jj), r, b + imm(jj)), 'ldsr', [r, t.tok], [half(f, jj)])
        return f
    def xread(self, t, X):
        for (qt, p, pos) in t.arg:
            if t.kind == 'x': r = aXs if qt == 's' else aXab; b = self.base(r, t)
            else: r = aEs if qt == 's' else aEab; b = 0
            for e in range(2):
                d = X[qt][2 * p + e]
                self.p.add('ds_read_b128 %s, %s offset:%d' % (d, r, b + pos + 64 * e), 'ldsr', [r, t.tok], [d])
    def lane(self, t):
        self.vops(['v_bfe_u32 %s, %s, 4, 6' % (t, vLIN)])
    def x_addr(self):
        t0, t1, t2 = vT
        self.lane(t0)
        self.vops(['v_lshrrev_b32 %s, 4, %s' % (t1, t0), 'v_bfe_u32 %s, %s, 1, 2' % (t2, t0), 'v_xor_b32 %s, %s, %s' % (t1, t1, t2),
                   'v_and_b32 %s, 7, %s' % (t2, t0), 'v_lshlrev_b32 %s, 7, %s' % (t2, t2), 'v_lshl_add_u32 %s, %s, 4, %s' % (t1, t1, t2),
                   'v_bfe_u32 %s, %s, 3, 1' % (t0, t0),
                   'v_mul_u32_u24 %s, 2112, %s' % (t2, t0), 'v_add3_u32 %s, %s, %s, %s' % (aXab, t1, t2, sW8448),
                   'v_lshlrev_b32 %s, 11, %s' % (t2, t0), 'v_add3_u32 %s, %s, %s, %s' % (aEab, t1, t2, sEXM),
                   's_and_b32 %s, %s, 2' % (sTMP, sW), 's_mul_i32 %s, %s, 8448' % (sT2, sTMP),
                   'v_mul_u32_u24 %s, 8512, %s' % (t2, t0), 'v_add3_u32 %s, %s, %s, %s' % (aXs, t1, t2, sT2),
                   's_mul_i32 %s, %s, %d' % (sT2, sTMP, EXW), 's_add_u32 %s, %s, %d' % (sT2, sT2, EX),
                   'v_mul_u32_u24 %s, %d, %s' % (t2, EXW, t0), 'v_add3_u32 %s, %s, %s, %s' % (aEs, t1, t2, sT2)])
        for r in (aXab, aXs, aEab, aEs): self.pair[r] = 0
    def k_addr(self):
        t0, t1, t2 = vT
        self.lane(t0)
        self.vops(['v_and_b32 %s, 15, %s' % (t1, t0), 'v_mul_u32_u24 %s, 1056, %s' % (t1, t1), 'v_and_b32 %s, 48, %s' % (t0, t0),
                   's_mul_i32 %s, %s, 16960' % (sTMP, sPAR), 'v_add3_u32 %s, %s, %s, %s' % (aK[0][0], t0, t1, sTMP),
                   's_sub_u32 %s, 16960, %s' % (sTMP, sTMP), 'v_add3_u32 %s, %s, %s, %s' % (aK[1][1], t0, t1, sTMP),
                   's_mul_i32 %s, %s, 16832' % (sT2, sPAR), 's_add_u32 %s, %s, 64' % (sT2, sT2), 'v_add3_u32 %s, %s, %s, %s' % (aK[0][1], t0, t1, sT2),
                   's_sub_u32 %s, 16960, %s' % (sT2, sT2), 'v_add3_u32 %s, %s, %s, %s' % (aK[1][0], t0, t1, sT2)])
        for r in aK[0] + aK[1]: self.pair[r] = 0
    def wo_rowpat(self):
        t0, t1, t2 = vT
        self.lane(t0)
        self.vops(['v_and_b32 %s, 16, %s' % (t1, t0), 'v_bfe_u32 %s, %s, 5, 1' % (t2, t0), 'v_lshl_add_u32 %s, %s, 3, %s' % (t1, t2, t1),
                   'v_bfe_u32 %s, %s, 3, 1' % (t2, t0), 'v_add_u32 %s, %s, %s' % (t1, t1, t2), 'v_lshl_add_u32 %s, %s, 1, %s' % (t1, sW, t1),
                   'v_mul_u32_u24 %s, 896, %s' % (t1, t1), 'v_and_b32 %s, 7, %s' % (t0, t0), 'v_lshl_add_u32 %s, %s, 4, %s' % (vWROW, t0, t1),
                   's_mul_i32 %s, %s, 4224' % (sTMP, sPAR), 's_sub_u32 %s, 4224, %s' % (sT2, sTMP)])
        for c in range(2):
            self.vops(['v_add_u32 %s, %s, %s' % (aW[1][c], sT2, aW[0][c]), 'v_add_u32 %s, %s, %s' % (aW[0][c], sTMP, aW[0][c])])
            self.pair[aW[1][c]] = self.pair.get(aW[0][c], 0)
    def qtile(self, t, X, Q, mid=None, acc=None):
        h, m, hf = t.arg
        acc = acc or self.qacc; nk = 8 if hf else 6
        for dt in range(4):
            if mid and dt in mid: mid[dt]()
            fr = [self.trread(t, aW[0][dt >> 1], lambda jj, ks=ks: ks * 4224 + jj * 256 + 8 * (dt & 1)) for ks in range(nk)]
            for qt in (('s', 'a', 'b') if dt < 2 else ('a', 'b')):
                A = acc[(dt, qt)]
                for ks in range(nk):
                    self.mfma(A, fr[ks], X[qt][6 * hf + ks], '0' if (hf == 0 and ks == 0) else A, (fr + ['B1']) if self.p.nm == 0 else ())
                if hf == 1:
                    for i in range(4): self.valu('v_mul_f32 %s, %s, %s' % (reg(A, i), sSCALE, reg(A, i)), [sSCALE, reg(A, i)], [reg(A, i)])
                    tq = 2 * m + (dt >> 1); dst = Q[qt][tq]
                    D = dst if dst[0] == 'v' else acc[(dt & 2, qt)]
                    for i in range(2):
                        dd = reg(D, 2 * (dt & 1) + i)
                        self.valu('v_cvt_pk_bf16_f32 %s, %s, %s' % (dd, reg(A, 2 * i), reg(A, 2 * i + 1)), [reg(A, 2 * i), reg(A, 2 * i + 1)], [dd])
                        if dst[0] == 'a': self.valu('v_accvgpr_write_b32 %s, %s' % (reg(dst, 2 * (dt & 1) + i), dd), [dd], [reg(dst, 2 * (dt & 1) + i)])
                    if (dt & 1) and qt == 's': self.exchange(D, Q['s'][tq + 1], self.rot(), self.nbar, self.nbar)
    def qk(self, i, t, Q, rbar):
        P = self.P[i & 1]
        for ks in range(2):
            for jj in range(2):
                fr = []
                for u in range(8):
                    f = self.frag(); r = aK[ks][u & 1]; b = self.base(r, t)
                    self.p.add('ds_read_b128 %s, %s offset:%d' % (f, r, b + jj * 512 + 128 * (u >> 1)), 'ldsr', [r, t.tok], [f])
                    fr.append(f)
                for qt in (('s', 'a', 'b') if ks == 0 else ('a', 'b')):
                    S = SQ[self.si % len(SQ)]; self.si += 1
                    for u in range(8): self.mfma(S, fr[u], Q[qt][u], NEGM[qt] if u == 0 else S)
                    for e in range(4): self.p.add('v_exp_f32 %s, %s' % (reg(S, e), reg(S, e)), 'trans', [reg(S, e)], [reg(S, e)])
                    D = P[qt][ks]
                    for e in range(2):
                        self.valu('v_cvt_pk_bf16_f32 %s, %s, %s' % (reg(D, 2 * jj + e), reg(S, 2 * e), reg(S, 2 * e + 1)),
                                  [reg(S, 2 * e), reg(S, 2 * e + 1)], [reg(D, 2 * jj + e)])
                    for e in range(4): self.valu('v_add_f32 %s, %s, %s' % (vL[qt], vL[qt], reg(S, e)), [vL[qt], reg(S, e)], [vL[qt]])
                    if qt == 's' and jj == 1: self.exchange(D, P['s'][1], self.rot(), rbar, rbar)
    def xreduce(self, r, op, t):
        for sw in ('32', '16'):
            self.valu('v_mov_b32 %s, %s' % (t, r), [r], [t])
            self.p.add('v_permlane%s_swap_b32 %s, %s' % (sw, r, t), 'trans', [r, t], [r, t], swap=True)
            self.valu('%s %s, %s, %s' % (op, r, r, t), [r, t], [r])
    def lcheck(self, lo, hi):
        self.valu('v_cmp_gt_f32 %s, %s, %s' % (sCMP, sLO, lo), [sLO, lo], [sCMP])
        self.salu('s_or_b64 %s, %s, %s' % (sBAD, sBAD, sCMP), [sBAD, sCMP], [sBAD])
        self.valu('v_cmp_lt_f32 %s, %s, %s' % (sCMP, sHI, hi), [sHI, hi], [sCMP])
        self.salu('s_or_b64 %s, %s, %s' % (sBAD, sBAD, sCMP), [sBAD, sCMP], [sBAD])
    def lfinish(self, h, btok):
        T = SQ[self.si % len(SQ)]
        t = [reg(T, e) for e in range(4)]
        for k, qt in enumerate('sab'): self.xreduce(vL[qt], 'v_add_f32', t[k])
        off = self.rot(); n7 = self.nbar
        tok = 'EX%d' % self.exi; self.exi += 1
        self.p.add('ds_write_b32 %s, %s offset:%d' % (aEXw, vL['s'], off), 'ldsw', [aEXw, vL['s'], btok], [tok])
        self.bar_ex.setdefault(n7, []).append(tok)
        self.vops(['v_min_f32 %s, %s, %s' % (t[1], vL['a'], vL['b']), 'v_max_f32 %s, %s, %s' % (t[2], vL['a'], vL['b'])])
        for x in 'ab': self.p.add('v_rcp_f32 %s, %s' % (vL[x], vL[x]), 'trans', [vL[x]], [vL[x]])
        def fin(b):
            self.p.add('ds_read_b32 %s, %s offset:%d' % (t[0], aEXr, off), 'ldsr', [aEXr, b], [t[0]])
            self.vops(['v_add_f32 %s, %s, %s' % (vL['s'], vL['s'], t[0]),
                       'v_min_f32 %s, %s, %s' % (t[1], t[1], vL['s']), 'v_max_f32 %s, %s, %s' % (t[2], t[2], vL['s'])])
            self.p.add('v_rcp_f32 %s, %s' % (vL['s'], vL['s']), 'trans', [vL['s']], [vL['s']])
            self.lcheck(t[1], t[2])
            if h == 1:
                off2 = self.rot()
                self.salu('s_or_b32 s46, s46, s47', [sBAD], [sBAD])
                self.salu('s_andn2_b32 s46, s46, %s' % sMODE, [sBAD, sMODE], [sBAD])
                self.valu('v_mov_b32 %s, s46' % t[0], [sBAD], [t[0]])
                self.exwrite('ds_write_b32 %s, %s offset:%d' % (aEXw, t[0], off2), t[0], n7 + 1)
                def vote(b3):
                    t2 = vT[1]
                    self.vops(['v_bfe_u32 %s, %s, 4, 2' % (t2, vLIN), 'v_mul_u32_u24 %s, %d, %s' % (t2, EXW, t2), 'v_add_u32 %s, %d, %s' % (t2, EX + off2, t2)])
                    self.p.add('ds_read_b32 %s, %s' % (t2, t2), 'ldsr', [t2, b3], [t2])
                    self.valu('v_cmp_ne_u32 vcc, 0, %s' % t2, [t2], ['vcc'])
                    self.p.add('s_cmp_lg_u64 vcc, 0\n    s_cbranch_scc1 L_restart', 'br', ['vcc'], ['OKGO'], mind={'vcc': 5})
                self.after_bar.setdefault(n7 + 1, []).append(vote)
        self.after_bar.setdefault(n7, []).append(fin)
    def pv(self, i, t, O, OB):
        P = self.P[i & 1]
        for dt in range(16):
            c = (dt >> 1) & 1
            f = [self.trread(t, aV[ks][c], lambda jj: jj * 512 + 128 * (dt >> 2) + 32 * (dt & 1)) for ks in range(2)]
            seq = [('a', 0), ('a', 1), ('b', 1), ('b', 0)] + ([('s', 0), ('s', 1)] if c == 0 else [])
            for k, (qt, ks) in enumerate(seq):
                A = O[qt][dt]
                self.mfma(A, f[ks], P[qt][ks], '0' if (i == 0 and k % 2 == 0) else A)
            if i == 7 and (dt & 1):
                for qt in (('a', 'b', 's') if c == 0 else ('a', 'b')):
                    D = OB[qt][dt >> 1]
                    for jj in range(2):
                        A = O[qt][dt - 1 + jj]
                        if A[0] == 'a':
                            T = D if jj == 0 else list(NEGM.values())[self.tq % 3]
                            if jj: self.tq += 1
                            for e in range(4): self.valu('v_accvgpr_read_b32 %s, %s' % (reg(T, e), reg(A, e)), [reg(A, e)], [reg(T, e)])
                            A = T
                        for e in range(4): self.valu('v_mul_f32 %s, %s, %s' % (reg(A, e), vL[qt], reg(A, e)), [vL[qt], reg(A, e)], [reg(A, e)])
                        for e in range(2):
                            self.valu('v_cvt_pk_bf16_f32 %s, %s, %s' % (reg(D, 2 * jj + e), reg(A, 2 * e), reg(A, 2 * e + 1)),
                                      [reg(A, 2 * e), reg(A, 2 * e + 1)], [reg(D, 2 * jj + e)])
                    if qt == 's':
                        nb = self.nbar + self.osdelay
                        self.exchange(D, OB['s'][(dt >> 1) + 1], 2048 + (dt >> 2) * 1024, nb, nb)
    def hookop(self, h, Q, tmp):
        allq = [x for qt in 'sab' for x in Q[qt]]
        self.p.add('s_cmp_lg_u32 %s, 0\n    s_cbranch_scc1 L_hook%d\nL_ret%d:' % (sMODE, h, h), 'br', allq + [sMODE],
                   list(NEGM.values()) + list(vL.values()) + vT + SQ[:3] + tmp + [sTMP, sHK])
        for qt in 'sab': self.valu('v_mov_b32 %s, 0' % vL[qt], [], [vL[qt]])
    def otile(self, t, OB):
        h, m = t.arg; acc = self.oacc
        if 0 < m < self.o.opre: acc = dict(zip(self.oacc.keys(), ABIG[10 * (m - 1): 10 * m]))
        for nt in range(4):
            fr = [self.trread(t, aW[u & 1][nt >> 1], lambda jj, u=u: (u >> 1) * 8448 + jj * 256 + 8 * (nt & 1)) for u in range(8)]
            for qt in (('a', 'b', 's') if nt < 2 else ('a', 'b')):
                A = acc[(nt, qt)]
                for u in range(8): self.mfma(A, fr[u], OB[h][qt][u], '0' if (h == 0 and u == 0) else A)
                if h == 1:
                    D = self.oacc[(nt & 2, qt)]
                    if A[0] == 'a':
                        T = self.oacc[(nt, qt)]
                        for e in range(4): self.valu('v_accvgpr_read_b32 %s, %s' % (reg(T, e), reg(A, e)), [reg(A, e)], [reg(T, e)])
                        A = T
                    for e in range(2):
                        self.valu('v_cvt_pk_bf16_f32 %s, %s, %s' % (reg(D, 2 * (nt & 1) + e), reg(A, 2 * e), reg(A, 2 * e + 1)),
                                  [reg(A, 2 * e), reg(A, 2 * e + 1)], [reg(D, 2 * (nt & 1) + e)])
                    if nt & 1:
                        c = 5 * m + {'a': 0, 'b': 1, 's': 2}[qt] + 3 * (nt >> 1)
                        self.salu('s_mov_b32 %s, %d' % (sST, c * 8192), [], [sST])
                        self.p.add('buffer_store_dwordx4 %s, %s, %s, %s offen%s' % (D, vP, sWS, sST, self.o.stflag), 'vst',
                                   [D, vP, sST, 'OKGO'], ['PST%d' % c], due=self.p.nm + 10)
    def out_addr(self):
        t0 = vT[0]
        self.lane(t0)
        self.vops(['v_lshlrev_b32 %s, 4, %s' % (vC, t0), 's_lshl_b32 %s, %s, 10' % (sTMP, sJ), 'v_add_u32 %s, %s, %s' % (vP, sTMP, vC),
                   'v_and_b32 %s, 15, %s' % (vO, t0), 'v_mul_u32_u24 %s, 1792, %s' % (vO, vO), 'v_lshlrev_b32 %s, 2, %s' % (vF, t0),
                   'v_and_b32 %s, 48, %s' % (t0, t0), 'v_add_u32 %s, %s, %s' % (vO, vO, t0)])
    def job_addr(self):
        for r in range(5):
            d = sJOB[r]
            txt = ['s_add_u32 {d}, {j}, %d' % (8 * r), 's_mul_i32 {t}, {d}, 52', 's_lshr_b32 {t}, {t}, 8', 's_mul_i32 {u}, {t}, 5',
                   's_sub_u32 {u}, {d}, {u}', 's_lshl_b32 {t}, {t}, 7', 's_cmp_ge_u32 {d}, 35', 's_cselect_b32 {d}, 0x40000000, {ob}',
                   's_add_u32 {d}, {d}, {t}', 's_cmp_ge_u32 {u}, 3', 's_cselect_b32 {t}, 1, 0', 's_cselect_b32 {h}, 3, 0', 's_sub_u32 {u}, {u}, {h}',
                   's_xor_b32 {t}, {t}, {par}', 's_lshl_b32 {t}, {t}, 6', 's_add_u32 {d}, {d}, {t}',
                   's_lshl_b32 {t}, {par}, 1', 's_add_u32 {t}, {t}, {u}', 's_cmp_eq_u32 {u}, 2', 's_cselect_b32 {t}, 4, {t}',
                   's_mul_i32 {t}, {t}, 28672', 's_add_u32 {d}, {d}, {t}']
            txt = [x.format(d=d, j=sJ, t=sTMP, u=sT2, h=sHK, ob=sOB, par=sPAR) for x in txt]
            k = 0
            while k < len(txt):
                n = 1
                if txt[k].startswith('s_cmp'):
                    while k + n < len(txt) and txt[k + n].startswith('s_cselect'): n += 1
                self.salu('\n    '.join(txt[k:k + n]), [d, sTMP, sT2, sHK], [d, sTMP, sT2, sHK]); k += n
    def publish(self, val, chunks, soft, nb=None):
        t = vT[1]
        self.valu('v_mov_b32 %s, %d' % (t, val), [], [t])
        self.vops(['v_lshlrev_b32 %s, 2, %s' % (vT[2], vC), 's_lshl_b32 %s, %s, 2' % (sTCH, sJ), 's_add_u32 %s, %s, %d' % (sTCH, sTCH, PREG)])
        self.p.add('buffer_store_dword %s, %s, %s, %s offen sc1' % (t, vT[2], sWS, sTCH), 'vst', [t, vT[2], sTCH, 'PUB'] + ['PST%d' % c for c in chunks],
                   [], soft=soft, nb=nb, due=nb)
    def poll(self, name, load, dst, check, nb, soft, rd):
        self.p.add(load, 'vld', rd, [dst, 'PUB'], nb=nb, due=nb)
        self.p.add(check + '\n    s_cbranch_scc0 L_spin%s\nL_back%s:' % (name, name), 'br', [dst] + list(rd), [dst, 'vcc', sHK, 'GO' + name], soft=soft,
                   due=None if nb is None else nb + soft)
        self.spins.append((name, load, check))
    def pollflags(self, name, val, nb, soft, rd=()):
        t = vT[0]
        self.salu('s_mov_b32 %s, %d' % (sT2, PREG), [], [sT2])
        self.poll(name, 'buffer_load_dword %s, %s, %s, %s offen sc1' % (t, vF, sWS, sT2), t,
                  'v_cmp_le_u32 vcc, %d, %s\n    s_nop 4\n    s_cmp_eq_u32 vcc_lo, 0xff' % (val, t), nb, soft, [vF, sT2] + list(rd))
    def jobload(self, r, L, go, nb=None, step=0):
        for jj in range(8):
            if jj % 4 == 0:
                so = self.soff()
                self.salu('s_lshl_b32 %s, %s, 13' % (so, sJ), [sJ], [so]); self.salu('s_add_u32 %s, %s, %d' % (so, so, r * 65536 + jj * 1024), [so], [so])
            pos = None if nb is None else nb + jj * step
            self.p.add('buffer_load_dwordx4 %s, %s, %s, %s offen offset:%d sc1' % (L[jj], vC, sWS, so, (jj & 3) * 1024), 'vld', [vC, so, go], [L[jj]], nb=pos, due=pos)
    def jobsum(self, r, L, T):
        A = [reg(T[0], e) for e in range(4)] + [reg(T[1], e) for e in range(4)]
        for jj in range(8):
            for e in range(4):
                src = reg(L[jj], e); t0, t1 = reg(T[2], (2 * e) & 3), reg(T[2], (2 * e + 1) & 3)
                if src[0] == 'a':
                    self.valu('v_accvgpr_read_b32 %s, %s' % (t1, src), [src], [t1]); src = t1
                if jj == 0: self.vops(['v_lshlrev_b32 %s, 16, %s' % (A[2 * e], src), 'v_and_b32 %s, 0xffff0000, %s' % (A[2 * e + 1], src)])
                else: self.vops(['v_lshlrev_b32 %s, 16, %s' % (t0, src), 'v_and_b32 %s, 0xffff0000, %s' % (t1, src),
                                 'v_add_f32 %s, %s, %s' % (A[2 * e], A[2 * e], t0), 'v_add_f32 %s, %s, %s' % (A[2 * e + 1], A[2 * e + 1], t1)])
        for e in range(4): self.vops(['v_cvt_pk_bf16_f32 %s, %s, %s' % (A[e], A[2 * e], A[2 * e + 1])])
        self.p.add('buffer_store_dwordx4 %s, %s, %s, %s offen' % (T[0], vO, sOUT, sJOB[r]), 'vst', [T[0], vO, sJOB[r]], [])
    def build(self):
        o = self.o
        W = [[Tile('wq%d_%d' % (h, k), 'wq', (h, k >> 1, k & 1)) for k in range(8)] for h in range(2)]
        def attn_tiles(h):
            l = [('k', 0)]
            for i in range(1, 8): l += [('k', i), ('v', i - 1)]
            return [Tile('%s%d_%d' % (k, h, i), k, (h, i)) for k, i in l + [('v', 7)]]
        A = [attn_tiles(h) for h in range(2)]
        WO = [Tile('wo%d_%d' % (m, h), 'wo', (h, m)) for h in range(2) for m in range(o.opre)] + [Tile('wo%d_%d' % (m, h), 'wo', (h, m)) for m in range(o.opre, 7) for h in range(2)]
        def xt(name, p):
            return (Tile(name + 'A', 'x', [('a', p, 0), ('b', p, 1024), ('s', p, 5248), ('a', p + 1, 4224), ('s', p + 1, 7360)]),
                    Tile(name + 'B', 'x', [('b', p + 1, 0), ('a', p + 2, 1024), ('b', p + 2, 4224), ('s', p + 2, 5248)]))
        XA0, XB0 = xt('x0', 0); XA1, XB1 = xt('x1', 4); XA2, XB2 = xt('x2', 4)
        XE = Tile('xe', 'xe', [('a', 3, 2048), ('b', 3, 3072), ('s', 3, 6144)])
        self.P = [{'a': [PQ[5 * b], PQ[5 * b + 1]], 'b': [PQ[5 * b + 2], PQ[5 * b + 3]], 's': [PQ[5 * b + 4], PX[b]]} for b in range(2)]
        self.qacc = dict(zip([(0, 's'), (0, 'a'), (0, 'b'), (1, 's'), (1, 'a'), (1, 'b'), (2, 'a'), (2, 'b'), (3, 'a'), (3, 'b')], PQ))
        self.oacc = dict(zip([(0, 'a'), (0, 'b'), (0, 's'), (1, 'a'), (1, 'b'), (1, 's'), (2, 'a'), (2, 'b'), (3, 'a'), (3, 'b')], PQ))
        def xmap(lst): return {qt: [lst[3 * ks + k] for ks in range(14)] for k, qt in enumerate('sab')}
        X0 = xmap(ABIG[:18] + BIG[:24]); X1 = xmap(ABIG)
        Q0 = {qt: ABIG[18 + 8 * k: 26 + 8 * k] for k, qt in enumerate('sab')}
        def omap(lst):
            O = {'a': [None] * 16, 'b': [None] * 16, 's': [None] * 16}; k = 0
            for u in range(8):
                for qt in (('s', 'a', 'b') if u % 2 == 0 else ('a', 'b')):
                    O[qt][2 * u] = lst[k]; O[qt][2 * u + 1] = lst[k + 1]; k += 2
            return O
        O0 = omap(BIG); O1 = omap(ABIG[:40])
        OB0 = {qt: [O0[qt][2 * u] for u in range(8)] for qt in 'sab'}
        Q1 = {qt: [O0[qt][2 * u + 1] for u in range(8)] for qt in 'sab'}
        for u in range(1, 8, 2): OB0['s'][u] = OPART0[u >> 1]; Q1['s'][u] = QPART1[u >> 1]
        OB1 = Q1
        self.maps = dict(Q0=Q0, Q1=Q1)
        QB = [3, 27]
        self.touch_plan = {}
        for h in range(2):
            for (at, tile, part) in (o.touch, o.touch1)[h]:
                for k in range(1 << o.tcls):
                    a2 = at + k * o.tdt
                    self.touch_plan.setdefault(QB[h] + int(a2 // 1), []).append(((A[h][tile], part, (k, o.tcls) if o.tcls else None), int((a2 % 1) * 70) - 8))
        for spec in o.t2.split(','):
            if spec == 'none': continue
            at, a0, lg = spec.split(':'); at = float(at)
            self.touch_plan.setdefault(int(at // 1), []).append((('wq', (0, int(a0), int(lg))), int((at % 1) * 70)))
        if o.wtouch & 2:
            self.touch_plan.setdefault(QB[1] - 4, []).append((('wq', (1, 0, 2)), 68))
        if o.wtouch & 4:
            for spec in o.t3.split(','):
                at, a0, lg = spec.split(':'); at = float(at)
                self.touch_plan.setdefault(QB[1] + 24 + int(at // 1), []).append((('wo', (int(a0), int(lg))), int((at % 1) * 70)))
        def dstamp():
            if o.pstamp == 2:
                k = STAMP0 + 2 + 2 * self.nstamp; self.nstamp += 1
                self.salu('s_waitcnt vmcnt(0)\n    s_memtime s[%d:%d]' % (k, k + 1), ['PRE'], ['m0', sTCH] + vT)
        dstamp()
        for spec in o.t1.split(','):
            if spec == 'none': continue
            kind, a0, lg = spec.split(':')
            self.ctouch(kind, (int(a0), int(lg)) if kind == 'x' else (0, int(a0), int(lg)), None, 'PRE'); dstamp()
        for t, s in ((XA0, 0), (XB0, 2), (W[0][0], 1), (XE, None), (XA1, 3)):
            t.slot = s; self.dma(t, 'PRE', -100, 0); dstamp()
        self.x_addr()
        self.setfr(FR + SQ + PX)
        self.bar(ready=[XA0, XB0, W[0][0]])
        self.xread(XA0, X0); self.xread(XB0, X0)
        W00, W01, W10, W11 = W[0][:4]
        acc2 = dict(zip(self.qacc.keys(), BIG[24:34]))
        self.bar(free=[XA0, XB0], issue=[(W10, 0), (XB1, 2)], span=54, lead=-1, waitregs=ABIG[:18])
        def mid0():
            self.bar(ready=[XE, XA1], nb=o.mid0); self.xread(XE, X0); self.xread(XA1, X0)
        self.qtile(W00, X0, Q0, {1: mid0})
        self.bar(ready=[W10], free=[W00, XA1], issue=[(W01, 1), (W11, 3)], span=66, lead=-6, nb=o.nb1)
        def mid1():
            self.bar(ready=[XB1], nb=60 + o.mid1); self.xread(XB1, X0)
        self.qtile(W10, X0, Q0, {1: mid1}, acc2)
        self.bar(ready=[W01], free=[W10, XB1], issue=[(W[0][4], 0), (W[0][5], 2)], span=76, lead=2, nb=o.nb2)
        self.k_addr()
        self.vops(['v_mov_b32 %s, 0' % vT[1], 'v_bfe_u32 %s, %s, 4, 6' % (vT[2], vLIN), 'v_lshlrev_b32 %s, 6, %s' % (vT[2], vT[2]),
                   's_lshl_b32 %s, %s, 2' % (sTCH, sJ), 's_add_u32 %s, %s, %d' % (sTCH, sTCH, PREG)])
        self.p.add('buffer_store_dword %s, %s, %s, %s offen sc1' % (vT[1], vT[2], sWS, sTCH), 'vst', [vT[1], vT[2], sTCH], ['FLAG0'], due=self.p.nm + 30)
        self.bar_ex.setdefault(QB[0] + 10, []).append('FLAG0')
        def announce(b):
            self.valu('v_mov_b32 %s, 1' % vT[1], [], [vT[1]])
            self.p.add('buffer_store_byte %s, %s, %s, %s offen sc1' % (vT[1], vTOUCH, sDBG, sJ), 'vst', [vT[1], vTOUCH, sJ, b], [], due=self.p.nm + 40)
        self.after_bar.setdefault(QB[0] + 10, []).append(announce)
        self.qtile(W01, X0, Q0)
        def stream(seq, k):
            self.bar(ready=[seq[k]], free=[seq[k - 1]], issue=[(seq[k + 3], seq[k - 1].slot)] if k + 3 < len(seq) else [])
        def attention(h, seq, k0, Q, O, OB, tmp, tail):
            stream(seq, k0)
            self.setfr(FR + ([QPART1[2], QPART1[3], AQ(62)] if h == 0 else [ABIG[40], ABIG[41], AQ(62)])[:o.xfr])
            self.hookop(h, Q, tmp)
            self.stamp()
            if h == 1: self.job_addr(); self.wo_rowpat()
            self.qk(0, seq[k0], Q, self.nbar)
            k = k0 + 1
            for i in range(1, 8):
                stream(seq, k); self.qk(i, seq[k], Q, self.nbar + (1 if i < 7 else 0)); k += 1
                stream(seq, k)
                if i == 7:
                    self.lfinish(h, 'B%d' % (self.nbar - 1)); tail(0)
                self.pv(i - 1, seq[k], O, OB); k += 1
            tail(1)
            self.pv(7, seq[k], O, OB)
            self.stamp()
        seq0 = [W00, W10, W01] + W[0][3:] + A[0] + [XA2, XB2]
        for k in range(3, 8):
            stream(seq0, k); self.qtile(W[0][k], X0, Q0, None, acc2 if k == 3 else None)
        V6, V7 = A[0][14], A[0][15]
        def tail0(st):
            if st == 0:
                self.x_addr(); self.xread(XE, X1)
            else:
                self.bar(ready=[V7, XA2], free=[V6, XE], issue=[(W[1][0], V6.slot)], span=30); self.xread(XA2, X1)
        self.osdelay = 2
        attention(0, seq0, 8, Q0, O0, OB0, BIG[:8], tail0)
        self.setfr(FR + SQ + PX)
        self.bar(ready=[W[1][0], XB2], free=[V7, XA2], issue=[(W[1][1], XA2.slot), (W[1][2], V7.slot)], span=64, lead=-10)
        self.xread(XB2, X1)
        self.qtile(W[1][0], X1, Q1)
        self.bar(ready=[W[1][1]], free=[W[1][0], XB2], issue=[(W[1][3], W[1][0].slot), (W[1][4], XB2.slot)], span=76, lead=-2, nb=self.p.nm - 14)
        self.k_addr()
        self.qtile(W[1][1], X1, Q1)
        seq1 = W[1] + A[1] + WO
        for k in range(2, 8):
            stream(seq1, k); self.qtile(W[1][k], X1, Q1)
        def tail1(st):
            if st == 0: self.out_addr()
            else: stream(seq1, 23)
        self.osdelay = o.opre
        attention(1, seq1, 8, Q1, O1, OB1, ABIG[:8], tail1)
        self.setfr(FR + SQ + PX)
        LA = [ABIG[8 * r: 8 * r + 8] for r in range(3)]
        for k in range(14):
            stream(seq1, 24 + k)
            g = self.p.nm
            if k == 6:
                d = half(NEGM['a'], 0)
                self.poll('R', 'buffer_load_dwordx2 %s, off, %s, 0 sc1' % (d, sDBG), d,
                          'v_and_b32 %s, %s, %s\n    v_cmp_eq_u32 vcc, 0x01010101, %s\n    s_nop 4\n    s_cmp_eq_u32 vcc_lo, -1' % (reg(d, 0), reg(d, 0), reg(d, 1), reg(d, 0)),
                          g + 10, 100, [])
            if k == 10: self.publish(1, range(24), o.pub_soft, g + o.pub_at)
            if k == 12:
                self.pollflags('A', 1, g + o.poll_at, o.poll_soft, ['GOR'])
                for r in range(3): self.jobload(r, LA[r], 'GOA', g + o.poll_at + o.poll_soft + 2 + 32 * r, 4)
            self.otile(WO[k], [OB0, OB1])
        self.stamp()
        T3 = list(NEGM.values())
        self.jobsum(0, LA[0], T3)
        self.publish(2, range(24, 35), 0)
        self.jobsum(1, LA[1], BIG[0:3]); self.jobsum(2, LA[2], BIG[3:6])
        self.pollflags('B', 2, None, 0)
        self.jobload(3, BIG[8:16], 'GOB'); self.jobload(4, BIG[16:24], 'GOB')
        self.jobsum(3, BIG[8:16], BIG[24:27]); self.jobsum(4, BIG[16:24], BIG[27:30])
        assert not self.bar_ex and not self.after_bar and not self.touch_plan, (self.bar_ex, self.after_bar.keys(), self.touch_plan.keys())
        return self.p.schedule()
    def hook(self, h):
        Q = self.maps['Q%d' % h]; F = BIG[:8] if h == 0 else ABIG[:8]
        a = Asm(); t0, t1, t2 = vT
        a.label('L_hook%d' % h)
        a('v_bfe_u32 %s, %s, 4, 6' % (t2, vLIN))
        a('v_and_b32 %s, 15, %s\nv_lshlrev_b32 %s, 9, %s' % (t0, t2, t0, t0))
        a('v_and_b32 %s, 48, %s\nv_add_u32 %s, %s, %s' % (t2, t2, t0, t0, t2))
        a('s_lshl_b32 %s, %s, 6' % (sTMP, sPAR))
        a('v_add_u32 %s, %s, %s\nv_xor_b32 %s, 64, %s' % (t0, sTMP, t0, t1, t0))
        for qt in 'sab': a('v_mov_b32 %s, 0xff800000' % vL[qt])
        a('s_mov_b32 %s, %d' % (sHK, h * 262144))
        a.label('L_hookloop%d' % h)
        for t in range(8): a('buffer_load_dwordx4 %s, %s, %s, %s offen offset:%d' % (F[t], (t0, t1)[t & 1], sK, sHK, 128 * (t >> 1)))
        a('s_waitcnt vmcnt(0)')
        for k, qt in enumerate('sab'):
            for t in range(8): a('v_mfma_f32_16x16x32_bf16 %s, %s, %s, %s' % (SQ[k], F[t], Q[qt][t], '0' if t == 0 else SQ[k]))
        a('s_nop 7\ns_nop 1')
        for k, qt in enumerate('sab'):
            a('v_max3_f32 %s, %s, %s, %s' % (vL[qt], vL[qt], reg(SQ[k], 0), reg(SQ[k], 1)))
            a('v_max3_f32 %s, %s, %s, %s' % (vL[qt], vL[qt], reg(SQ[k], 2), reg(SQ[k], 3)))
        a('s_add_u32 %s, %s, 8192\ns_cmp_lt_u32 %s, %d\ns_cbranch_scc1 L_hookloop%d' % (sHK, sHK, sHK, (h + 1) * 262144, h))
        for qt in 'sab':
            for sw in ('32', '16'):
                a('v_mov_b32 %s, %s\ns_nop 1\nv_permlane%s_swap_b32 %s, %s\ns_nop 1\nv_max_f32 %s, %s, %s' % (t2, vL[qt], sw, vL[qt], t2, vL[qt], vL[qt], t2))
            for e in range(4): a('v_sub_f32 %s, 0, %s' % (reg(NEGM[qt], e), vL[qt]))
        a('s_nop 2\ns_branch L_ret%d' % h)
        return a.text()
    def spincode(self):
        a = Asm()
        for name, load, check in self.spins:
            a.label('L_spin' + name)
            a('s_mov_b32 %s, 0x40000' % sHK)
            a.label('L_spinloop' + name)
            a(load); a('s_waitcnt vmcnt(0)'); a(check)
            a('s_cbranch_scc1 L_back%s\ns_sub_u32 %s, %s, 1\ns_cmp_lg_u32 %s, 0\ns_cbranch_scc1 L_spinloop%s\ns_branch L_back%s' % (name, sHK, sHK, sHK, name, name))
        return a.text()

def prologue(o):
    a = Asm()
    a("""
    s_cmp_ge_u32 s2, 256
    s_cbranch_scc1 L_end
    EARLY_TOUCH
    s_and_b32 s61, s2, 7
    s_lshr_b32 s62, s2, 3
    s_lshr_b32 s63, s61, 2
    s_mul_i32 s50, s63, 40
    s_add_u32 s56, s0, s50
    s_addc_u32 s57, s1, 0
    s_load_dwordx2 s[8:9], s[56:57], 0
    s_load_dwordx2 s[20:21], s[56:57], 24
    s_load_dwordx2 s[12:13], s[56:57], 8
    s_load_dwordx2 s[16:17], s[56:57], 16
    s_load_dwordx2 s[24:25], s[56:57], 32
    s_load_dwordx2 s[28:29], s[0:1], 96
    s_load_dwordx2 s[4:5], s[0:1], 80
    s_load_dwordx2 s[96:97], s[0:1], 88
    """)
    if o.stamps == 1: a('s_memrealtime s[64:65]\ns_memtime s[66:67]')
    if o.stamps == 2: a('s_memtime s[64:65]')
    if o.map == 'B': a('s_and_b32 s38, s61, 3\ns_lshl_b32 s38, s38, 1\ns_and_b32 s50, s62, 1\ns_add_u32 s38, s38, s50\ns_lshr_b32 s60, s62, 1')
    if o.map == 'C': a('s_and_b32 s38, s61, 1\ns_lshl_b32 s38, s38, 2\ns_and_b32 s50, s62, 3\ns_add_u32 s38, s38, s50\ns_and_b32 s60, s61, 2\ns_lshl_b32 s60, s60, 2\ns_lshr_b32 s50, s62, 2\ns_add_u32 s60, s60, s50')
    if o.map == 'A': a('s_and_b32 s38, s62, 7\ns_and_b32 s60, s61, 3\ns_lshl_b32 s60, s60, 2\ns_lshr_b32 s50, s62, 3\ns_add_u32 s60, s60, s50')
    nx, nw = {'A': (8, 4), 'B': (2, 16), 'C': (4, 8)}[o.map]
    a('s_and_b32 s61, s38, %d\ns_and_b32 s62, s60, %d' % (nx - 1, nw - 1))
    a("""
    v_lshrrev_b32 v21, 6, v0
    v_lshlrev_b32 v15, 7, v0
    v_readfirstlane_b32 s32, v21
    v_and_b32 v21, 63, v0
    s_mov_b32 s43, 0
    s_mov_b32 s10, 143360
    s_mov_b32 s11, 0x20000
    s_mov_b32 s14, 524288
    s_mov_b32 s15, 0x20000
    s_mov_b32 s18, 524288
    s_mov_b32 s19, 0x20000
    s_mov_b32 s23, 0x20000
    s_mov_b32 s26, 458752
    s_mov_b32 s27, 0x20000
    s_mov_b32 s31, 0x20000
    s_mov_b32 s6, 4587520
    s_mov_b32 s7, 0x20000
    s_mov_b32 s98, 16
    s_mov_b32 s99, 0x20000
    s_and_b32 s33, s32, 1
    s_mul_i32 s34, s32, 8448
    s_lshr_b32 s59, s32, 1
    s_lshl_b32 s35, s32, 10
    s_lshl_b32 s50, s33, 3
    s_add_u32 s35, s35, s50
    s_lshl_b32 s50, s59, 6
    s_add_u32 s35, s35, s50
    s_lshl_b32 s50, s33, 6
    s_add_u32 s39, s34, s50
    s_mul_i32 s37, s59, 71680
    s_mul_i32 s36, s33, 28672
    s_add_u32 s36, s36, s37
    s_mul_i32 s50, s33, 7168
    s_add_u32 s37, s37, s50
    s_add_u32 s37, s37, 57344
    s_lshl_b32 s50, s32, 13
    v_lshl_add_u32 v12, v21, 4, s50
    v_lshrrev_b32 v22, 3, v21
    v_mul_u32_u24 v14, 896, v22
    v_lshrrev_b32 v22, 4, v21
    v_and_b32 v23, 7, v21
    v_xor_b32 v22, v22, v23
    v_lshl_add_u32 v14, v22, 4, v14
    """)
    a('s_mov_b32 s30, %d\ns_mul_i32 s3, s32, %d\ns_add_u32 s3, s3, %d' % (PREG + 32, EXW, EX))
    a('s_mov_b32 %s, 0x%x\ns_mov_b32 %s, 0x%x\ns_mov_b32 %s, 0x%x' % (sSCALE, SCALE, sLO, (127 - 30) << 23, sHI, (127 + 30) << 23))
    a("""
    s_mul_i32 s100, s60, 10
    s_mul_i32 s50, s59, 5
    s_add_u32 s100, s100, s50
    s_mul_i32 s100, s100, 28672
    s_mul_i32 s50, s63, 896
    s_add_u32 s100, s100, s50
    s_waitcnt lgkmcnt(0)
    s_mul_i32 s50, s60, 143360
    s_add_u32 s8, s8, s50
    s_addc_u32 s9, s9, 0
    s_lshl_b32 s50, s38, 10
    s_add_u32 s20, s20, s50
    s_addc_u32 s21, s21, 0
    s_sub_u32 s22, 3670016, s50
    s_lshl_b32 s58, s60, 3
    s_add_u32 s58, s58, s38
    KVOFF
    s_add_u32 s12, s12, s50
    s_addc_u32 s13, s13, 0
    s_add_u32 s16, s16, s50
    s_addc_u32 s17, s17, 0
    s_mul_i32 s50, s38, 458752
    s_add_u32 s24, s24, s50
    s_addc_u32 s25, s25, 0
    s_lshl_b32 s58, s63, 4
    s_add_u32 s58, s58, s60
    s_lshl_b32 s50, s58, 3
    s_add_u32 s96, s96, s50
    s_addc_u32 s97, s97, 0
    s_lshl_b32 s58, s58, 2
    s_add_u32 s58, s58, s32
    """)
    a('s_mul_i32 s50, s58, %d\ns_add_u32 s28, s28, s50\ns_addc_u32 s29, s29, 0' % PSTRIDE)
    a.label('L_start')
    a("""
    s_mov_b64 s[46:47], 0
    v_bfe_u32 v21, v12, 4, 6
    v_bfe_u32 v13, v21, 5, 1
    v_lshlrev_b32 v13, 4, v13
    v_bfe_u32 v23, v21, 4, 1
    v_lshl_add_u32 v13, v23, 2, v13
    v_bfe_u32 v23, v21, 3, 1
    v_add_u32 v13, v13, v23
    s_lshr_b32 s101, s32, 1
    s_lshl_b32 s101, s101, 3
    s_lshl_b32 s50, s33, 1
    s_add_u32 s101, s101, s50
    v_add_u32 v13, s101, v13
    v_lshlrev_b32 v13, 13, v13
    v_and_b32 v23, 7, v21
    v_lshl_add_u32 v13, v23, 4, v13
    """)
    t = a.text()
    et = ('s_getpc_b64 s[54:55]\n    s_bfe_u32 s3, s2, 0x30003\n    v_lshrrev_b32 v15, 4, v0\n    v_lshl_add_u32 v15, v15, 3, s3\n    v_lshlrev_b32 v15, 7, v15\n'
          '    global_load_dword a252, v15, s[54:55]') if o.early else ''
    t = t.replace('EARLY_TOUCH', et).replace('KVOFF', 's_mov_b32 s50, 0' if o.fakekv else 's_lshl_b32 s50, s58, 19')
    if o.rot: t = t.replace('L_start:', '    s_lshr_b32 s63, s2, 3\n    s_mul_i32 s63, s63, %d\n    s_lshl_b32 s63, s63, 15\nL_start:' % o.rot)
    if o.pstamp == 1:
        t = t.replace('    s_waitcnt lgkmcnt(0)\n    s_mul_i32 s50, s60, 143360', '    s_memtime s[66:67]\n    s_waitcnt lgkmcnt(0)\n    s_memtime s[68:69]\n    s_mul_i32 s50, s60, 143360')
        t += '    s_memtime s[70:71]\n'
    return t

def prologue2():
    return ["v_bfe_u32 v21, v12, 4, 6",
            "v_lshrrev_b32 v23, 2, v21", "v_mul_u32_u24 v4, 1056, v23", "v_and_b32 v22, 3, v21", "v_lshl_add_u32 v4, v22, 3, v4",
            "s_mul_i32 s101, s33, 16960", "s_mul_i32 s50, s33, 16832", "s_add_u32 s50, s50, 64", "v_add_u32 v5, s50, v4",
            "s_sub_u32 s50, 16960, s50", "v_add_u32 v6, s50, v4", "s_sub_u32 s50, 16960, s101", "v_add_u32 v7, s50, v4", "v_add_u32 v4, s101, v4",
            "v_bfe_u32 v23, v21, 3, 1", "v_mul_u32_u24 v8, 1032, v23", "v_bfe_u32 v23, v21, 4, 1", "v_mul_u32_u24 v23, 2112, v23", "v_add_u32 v8, v8, v23",
            "v_bfe_u32 v23, v21, 2, 1", "v_lshl_add_u32 v8, v23, 7, v8", "v_bfe_u32 v23, v21, 5, 1", "v_lshl_add_u32 v8, v23, 9, v8",
            "v_lshl_add_u32 v8, v22, 4, v8", "s_lshl_b32 s101, s33, 6", "s_sub_u32 s50, 64, s101", "v_add_u32 v9, s50, v8", "v_add_u32 v8, s101, v8",
            "v_lshl_add_u32 v16, v21, 4, s3", "s_xor_b32 s50, s32, 1", "s_mul_i32 s50, s50, %d" % EXW, "s_add_u32 s50, s50, %d" % EX,
            "v_lshl_add_u32 v17, v21, 4, s50"] + ["v_mov_b32 v%d, 0" % i for i in range(24, 36)]

def main(argv):
    ap = argparse.ArgumentParser()
    ap.add_argument('-o', default='k.s')
    ap.add_argument('--map', default='B')
    ap.add_argument('--stamps', type=int, default=0)
    ap.add_argument('--stiles', default='0:60:4')
    ap.add_argument('--lat_lds', type=float, default=8)
    ap.add_argument('--lat_vm', type=float, default=40)
    ap.add_argument('--late', type=float, default=1)
    ap.add_argument('--dma_span', type=float, default=66)
    ap.add_argument('--dma_lead', type=float, default=-8)
    ap.add_argument('--kvflag', default=' nt')
    ap.add_argument('--wflag', default='')
    ap.add_argument('--xflag', default='')
    ap.add_argument('--codetouch', type=int, default=3)
    ap.add_argument('--ct_lead', type=int, default=6144)
    ap.add_argument('--wtouch', type=int, default=6)
    ap.add_argument('--touch', default='')
    ap.add_argument('--touch1', default='')
    ap.add_argument('--tflag', default='')
    ap.add_argument('--pub_at', type=int, default=70)
    ap.add_argument('--pub_soft', type=int, default=50)
    ap.add_argument('--poll_at', type=int, default=-10)
    ap.add_argument('--poll_soft', type=int, default=50)
    ap.add_argument('-v', action='store_true')
    ap.add_argument('--inflight', type=int, default=0)
    ap.add_argument('--mix', type=int, default=8)
    ap.add_argument('--pace', default='')
    ap.add_argument('--tcls', type=int, default=0)
    ap.add_argument('--tdt', type=float, default=0.5)
    ap.add_argument('--nb1', type=int, default=46)
    ap.add_argument('--nb2', type=int, default=106)
    ap.add_argument('--mid0', type=int, default=8)
    ap.add_argument('--mid1', type=int, default=15)
    ap.add_argument('--opre', type=int, default=4)
    ap.add_argument('--t1', default='none')
    ap.add_argument('--t3', default='-3.05:0:2,2.1:4:2')
    ap.add_argument('--t2', default='none')
    ap.add_argument('--xfr', type=int, default=3)
    ap.add_argument('--vmsp', type=int, default=4)
    ap.add_argument('--show', default='')
    ap.add_argument('--ablate', default='')
    ap.add_argument('--arange', default='900:1500')
    ap.add_argument('--dbg_lo', type=int, default=0)
    ap.add_argument('--dbg_hi', type=int, default=6)
    ap.add_argument('--rep', type=int, default=1)
    ap.add_argument('--dbgstamp', type=int, default=0)
    ap.add_argument('--fakekv', type=int, default=0)
    ap.add_argument('--rot', type=int, default=0)
    ap.add_argument('--wt_lead', type=int, default=6)
    ap.add_argument('--wt0', type=int, default=2)
    ap.add_argument('--early', type=int, default=1)
    ap.add_argument('--pstamp', type=int, default=0)
    ap.add_argument('--stflag', default='sc1')
    o = ap.parse_args(argv)
    for k in ('kvflag', 'wflag', 'xflag', 'stflag', 'tflag'):
        v = getattr(o, k).strip().replace('+', ' ')
        setattr(o, k, (' ' + v) if v and v != 'none' else '')
    pt = lambda v: [(float(x.split(':')[0]), int(x.split(':')[1]), int((x.split(':') + ['0'])[2])) for x in v.split(',') if x and x != 'none']
    o.touch1 = pt(o.touch1 or o.touch); o.touch = pt(o.touch)
    o.stiles = list(range(*map(int, o.stiles.split(':'))))[:14]
    o.pace = [float(x) for x in o.pace.split(':')] if o.pace else None
    g = Gen(o)
    if o.pstamp == 1: g.nstamp = 4; o.stiles = o.stiles[:10]
    if o.pstamp == 2: o.stiles = o.stiles[:4]
    xa = g.x_addr
    def first_x():
        if o.pstamp == 1: g.salu('s_memtime s[72:73]', ['PRE', 'm0'], ['STAMP'])
        g.vops(prologue2()); g.x_addr = xa; xa()
    g.x_addr = first_x
    out = g.build()
    if o.ablate:
        kinds = o.ablate.split(','); lo, hi = map(int, o.arange.split(':')); mi = -1; o2 = []
        for t, k in out:
            if k == 'mfma': mi += 1
            if 'L_restart' in t: continue
            if k == 'ldsr' and 'half' in kinds and (640 <= mi < 1700 or 2480 <= mi < 3560 or ('halfw' in kinds and (200 <= mi < 500 or 1950 <= mi < 2350 or 3700 <= mi < 4700))):
                nh = getattr(o, '_nh', 0) + (2 if 'b128' in t else 1); o._nh = nh
                if ((nh - 1) // 2) % 2 == 0 or 'all' in kinds: continue
            if lo <= mi < hi:
                if k in kinds and 'v_add_u32' not in t and 'v_subrev' not in t and 'memtime' not in t: continue
                if k == 'bar' and 'bar' in kinds: t = t.replace('s_barrier', 's_nop 0')
                if k == 'wait' and 'lgw' in kinds and 'lgkmcnt' in t and 'vmcnt' not in t: continue
            o2.append((t, k))
        out = o2
    body = prologue(o)
    body += ''.join('    ' + t + '\n' for t, k in out)
    a = Asm()
    if o.stamps:
        w = 4 if o.stamps == 1 else 2
        k = STAMP0 + w + w * g.nstamp; ns = g.nstamp + 2
        a('s_waitcnt vmcnt(0)')
        a('s_memrealtime s[%d:%d]\ns_memtime s[%d:%d]' % (k, k + 1, k + 2, k + 3) if w == 4 else 's_memtime s[%d:%d]' % (k, k + 1))
        a('s_load_dwordx2 s[40:41], s[0:1], 96\ns_waitcnt lgkmcnt(0)\ns_cmp_lg_u32 s32, 0\ns_cbranch_scc1 L_end')
        a('s_mul_i32 s50, s2, %d\ns_add_u32 s50, s50, 280000000\nv_mov_b32 v8, s50' % (ns * 16))
        for s in range(ns):
            for j in range(4): a('v_mov_b32 v%d, s%d' % (4 + j, STAMP0 + w * s + (j % w)))
            a('global_store_dwordx4 v8, v[4:7], s[40:41] offset:%d\ns_nop 3' % (16 * s))
        if o.dbgstamp:
            a('s_cmp_lg_u32 s2, 0\ns_cbranch_scc1 L_end\ns_load_dwordx2 s[40:41], s[0:1], 88\ns_waitcnt lgkmcnt(0)\nv_mov_b32 v8, 0')
            for s in range(ns - 1):
                a('s_sub_u32 s50, s%d, s%d\nv_mov_b32 v4, s50\nglobal_store_dword v8, v4, s[40:41] offset:%d' % (STAMP0 + 4 * s + 4, STAMP0 + 4 * s, 4 * s))
                a('s_sub_u32 s50, s%d, s%d\nv_mov_b32 v5, s50\nglobal_store_dword v8, v5, s[40:41] offset:%d\ns_nop 3' % (STAMP0 + 4 * s + 6, STAMP0 + 4 * s + 2, 32 + 4 * s))
        if o.dbgstamp > 1:
            a('s_load_dwordx2 s[40:41], s[0:1], 96\ns_waitcnt lgkmcnt(0)\nv_mov_b32 v8, 279000000\nglobal_load_dword v9, v8, s[40:41] sc1\ns_waitcnt vmcnt(0)')
            a('v_readfirstlane_b32 s51, v9\nv_mov_b32 v9, 0x13572468\nglobal_store_dword v8, v9, s[40:41] sc1\ns_cmp_eq_u32 s51, 0x13572468\ns_cbranch_scc1 L_end')
            a('s_sub_u32 s50, s%d, s%d\ns_cmp_lt_u32 s50, %d\ns_cbranch_scc1 L_end' % (STAMP0 + 4 * o.dbg_hi, STAMP0 + 4 * o.dbg_lo, o.dbgstamp))
            for s in range(ns - 1):
                a('s_sub_u32 s50, s%d, s%d\nv_cvt_f32_u32 v%d, s50' % (STAMP0 + 4 * s + 4, STAMP0 + 4 * s, 10 + s))
            a('s_sub_u32 s50, s%d, s%d\nv_cvt_f32_u32 v16, s50' % (STAMP0 + 6, STAMP0 + 2))
            a('s_sub_u32 s50, s%d, s%d\nv_cvt_f32_u32 v17, s50' % (STAMP0 + 10, STAMP0 + 6))
            for s in range(4): a('v_cvt_pk_bf16_f32 v%d, v%d, v%d' % (20 + s, 10 + 2 * s, 11 + 2 * s))
            a('buffer_store_dwordx4 v[20:23], off, s[4:7], 0')
        print('stamps: use --stamps %d' % (2 * ns))
    a('L_end:\ns_endpgm')
    a('L_restart:\ns_waitcnt vmcnt(0) lgkmcnt(0)\ns_barrier\ns_mov_b32 %s, -1\ns_branch L_start' % sMODE)
    body += a.text() + g.spincode() + g.hook(0) + g.hook(1) + '    .fill 8192, 4, 0xBF800000\n'
    txt = build([dict(name=NAME + '_kernel', grid=256, block=256, lds=LDS_BYTES, body=body, vgpr=512, sgpr=102, accum=256)] * o.rep)
    open(o.o, 'w').write(txt)
    tot, costs = estimate(out)
    nm = g.p.nm
    print('mfma %d  est cycles %d (ideal %d)  forced ops %d  instrs %d  bytes %d' % (nm, tot, nm * 16, g.p.stats['forced'], len(out), len(txt)))
    bounds = [0, 560, 1840, 2400, 3680, 4800]
    print('phase overhead:', [sum(c - 16 for i, c in costs if lo <= i < hi) for lo, hi in zip(bounds, bounds[1:])])
    if o.show:
        lo, hi = map(int, o.show.split(':')); mi = -1; row = []
        ab = {'mfma': ' M', 'ldsr': 'T', 'trans': 'E', 'valu': 'a', 'dma': 'D', 'vld': 'L', 'vst': 'S', 'wait': 'w', 'salu': 's', 'bar': '|BAR|', 'ldsw': 'W', 'nop': 'n', 'br': '^'}
        cd = dict(costs)
        for t, k in out:
            if k == 'mfma':
                if lo <= mi < hi and cd.get(mi, 16) > 16: row.append('(%d)' % cd[mi])
                mi += 1
            if lo <= mi < hi: row.append(ab[k])
        print(''.join(row))
    if o.v:
        print('forced:', g.p.stats['forced_gaps'])
        print('over:', [(i, c) for i, c in costs if c > 16])

if __name__ == '__main__':
    main(sys.argv[1:])
```

```python
import sys, argparse, struct
from asmlib import *
from sched import Prog, estimate

SLOT = 33792; PAIR = 2 * SLOT
EX = 4 * SLOT; EXW = 7168
LDS_BYTES = 163840
SCALE = struct.unpack('<I', struct.pack('<f', 1.4426950408889634 / 16.0))[0]
PREG = 35 * 8192
PSTRIDE = PREG + 1024

def q(f, n): return '%s[%d:%d]' % (f, 4 * n, 4 * n + 3)
def VQ(n): return q('v', n)
def AQ(n): return q('a', n)
def reg(quad, i):
    f = quad[0]; lo = int(quad[2:-1].split(':')[0]); return '%s%d' % (f, lo + i)
def half(quad, h):
    f = quad[0]; lo = int(quad[2:-1].split(':')[0]) + 2 * h; return '%s[%d:%d]' % (f, lo, lo + 1)

aK = [['v0', 'v1'], ['v2', 'v3']]; aV = [['v4', 'v5'], ['v6', 'v7']]; aW = [['v8', 'v9'], ['v10', 'v11']]
aXab, aXs, aEab, aEs = 'v0', 'v1', 'v2', 'v3'
vP, vC, vO, vF = 'v0', 'v1', 'v2', 'v3'
vLIN, vWROW, vX, vTOUCH, aEXw, aEXr = 'v12', 'v13', 'v14', 'v15', 'v16', 'v17'
vL = {'a': 'v18', 'b': 'v19', 's': 'v20'}
vT = ['v21', 'v22', 'v23']
NEGM = {'a': VQ(6), 'b': VQ(7), 's': VQ(8)}
SQ = [VQ(9 + i) for i in range(5)]
PQ = [VQ(14 + i) for i in range(10)]
BIG = [VQ(24 + i) for i in range(40)]
FR = [AQ(i) for i in range(10)]
PX = [AQ(10), AQ(11)]
OPART0 = [AQ(12 + i) for i in range(4)]
QPART1 = [AQ(16 + i) for i in range(4)]
ABIG = [AQ(20 + i) for i in range(42)]
aTOUCH = 'a252'
sX, sK, sV, sWQ, sWO, sWS = 's[8:11]', 's[12:15]', 's[16:19]', 's[20:23]', 's[24:27]', 's[28:31]'
sW, sPAR, sW8448, sWPAD = 's32', 's33', 's34', 's35'
sXA, sXS, sJ = 's36', 's37', 's38'
sSOFF = ['s40', 's41']; sSCALE, sMODE, sLO, sHI = 's42', 's43', 's44', 's45'
sBAD = 's[46:47]'; sCMP = 's[48:49]'; sTMP = 's50'; sST = 's51'; sTCH = 's52'; sHK = 's53'
sPC = 's[54:55]'
sOUT, sDBG = 's[4:7]', 's[96:99]'
sXSM, sEXM = 's39', 's3'
sOB = 's100'; sT2 = 's101'; sSHX, sSHW = 's61', 's62'
sJOB = ['s56', 's57', 's58', 's59', 's60']
STAMP0 = 64

class Tile:
    def __init__(self, name, kind, arg): self.name, self.kind, self.arg = name, kind, arg; self.slot = None; self.nd = 0
    @property
    def tok(self): return 'T_' + self.name

class Gen:
    def __init__(self, o):
        self.o = o
        self.p = Prog(lat_lds=o.lat_lds, lat_vm=o.lat_vm, late=o.late, vmsp=o.vmsp)
        self.pair = {}
        self.frl = FR; self.fri = 0
        self.si = 0; self.soi = 0; self.exi = 0; self.exq = 0; self.tq = 0
        self.nbar = 0
        self.bar_ex = {}
        self.after_bar = {}
        self.nstamp = 0
        self.spins = []; self.kvhist = []
    def valu(self, t, rd, wr, **k): return self.p.add(t, 'valu', rd, wr, **k)
    def salu(self, t, rd, wr, **k): return self.p.add(t, 'salu', rd, wr, **k)
    def vops(self, lines):
        for l in lines:
            ops = [x.strip() for x in l.split(None, 1)[1].split(',')]
            rd = [x for x in ops[1:] if x[0] in 'vs' and x[1:].isdigit()]
            (self.salu if l.startswith('s_') else self.valu)(l, rd, [ops[0]])
    def mfma(self, d, a, b, c, extra=()):
        self.p.add('v_mfma_f32_16x16x32_bf16 %s, %s, %s, %s' % (d, a, b, c), 'mfma', [a, b] + list(extra), [d], srcc=([] if c == '0' else [c]))
    def frag(self):
        f = self.frl[self.fri % len(self.frl)]; self.fri += 1; return f
    def setfr(self, l):
        self.frl = l; self.fri = 0
    def base(self, r, t):
        pr = t.slot >> 1
        if self.pair.get(r, 0) != pr:
            self.valu(('v_add_u32 %s, %d, %s' if pr else 'v_subrev_u32 %s, %d, %s') % (r, PAIR, r), [r], [r])
            self.pair[r] = pr
        return (t.slot & 1) * SLOT
    def tstamp(self, n):
        o = self.o
        if o.stamps != 2 or n not in o.stiles: return ''
        k = STAMP0 + 2 + 2 * self.nstamp; self.nstamp += 1
        return '\n    s_memtime s[%d:%d]' % (k, k + 1)
    def stamp(self):
        if self.o.stamps != 1: return
        k = STAMP0 + 4 + 4 * self.nstamp; self.nstamp += 1
        self.salu('s_memrealtime s[%d:%d]\n    s_memtime s[%d:%d]' % (k, k + 1, k + 2, k + 3), [], ['STAMP'], nb=self.p.nm, due=self.p.nm)
    def soff(self):
        so = sSOFF[self.soi & 1]; self.soi += 1; return so
    def kvoff(self, h, i, extra):
        if self.o.fakekv == 2: return ('s_mov_b32 %s, ' + str(4096 + (i & 1) * 32768 + extra), [])
        if not self.o.rot: return ('s_mov_b32 %s, ' + str(h * 262144 + i * 32768 + extra), [])
        t = 's_add_u32 %%s, s63, %d|s_and_b32 %%s, %%s, 0x3ffff' % (i * 32768 + extra)
        if h: t += '|s_bitset1_b32 %s, 18'
        return (t, ['s63'])
    def pace(self, t, j):
        if t.kind not in ('k', 'v') or not self.o.pace: return None
        h, i = t.arg; k = {('k', 0): 0, ('k', 1): 1, ('v', 0): 2}.get((t.kind, i))
        if k is None: return None
        start, step = self.o.pace
        return (560, 2400)[h] + start + (8 * k + j) * step
    def dma(self, t, tok, g0, span):
        o = self.o; kind = t.kind
        slot = t.slot * SLOT if t.slot is not None else None
        items = []
        if kind in ('k', 'v'):
            h, i = t.arg
            for j in range(8):
                items.append((self.kvoff(h, i, (j >> 2) * 4096) if j % 4 == 0 else None,
                              (sW8448, slot + 32 * j + 4096 * (j >> 2)), vLIN, sK if kind == 'k' else sV, (j & 3) * 1024, o.kvflag))
        elif kind == 'wq':
            h, m, hf = t.arg
            for j in range(8 if hf else 6):
                items.append((('s_mov_b32 %s, ' + str((192 * hf + 32 * j) * 8192 + h * 512 + m * 128), []), (sWPAD, slot + 4224 * j), vWROW, sWQ, 0, o.wflag))
        elif kind == 'wo':
            h, m = t.arg
            for j in range(8):
                items.append((('s_mov_b32 %s, ' + str((h * 256 + 32 * j) * 896 + m * 128), []), (sWPAD, slot + 4224 * j), vWROW, sWO, 0, o.wflag))
        else:
            for (qt, p, pos) in t.arg:
                if kind == 'x': ab, sm, hs, b0 = sW8448, sXSM, 2112, slot
                else: ab, sm, hs, b0 = sEXM, sEXM, 2048, 0
                if qt == 's': items.append((('s_add_u32 %%s, %s, %d' % (sXS, 128 * p), [sXS]), (sm, b0 + pos), vX, sX, 0, o.xflag))
                else:
                    for hf in range(2):
                        items.append((('s_add_u32 %%s, %s, %d' % (sXA, 128 * p + 7168 * hf + (14336 if qt == 'b' else 0)), [sXA]),
                                      (ab, b0 + pos + hs * hf), vX, sX, 0, o.xflag))
        t.nd = len(items); so = None
        for j, (ss, (mb, mo), vo, srd, imm, fl) in enumerate(items):
            if ss is not None:
                so = self.soff()
                for l in ss[0].split('|'): self.salu(l.replace('%s', so), ss[1] + [so], [so])
            self.salu('s_add_u32 m0, %s, %d' % (mb, mo), [mb], ['m0'])
            fc = []
            if kind in ('k', 'v') and o.inflight:
                self.kvhist.append('D_%s_%d' % (t.name, j))
                if len(self.kvhist) > o.inflight: fc = [self.kvhist[-1 - o.inflight]]
            if kind in ('k', 'v') and o.mix < 8 and (j * o.mix) % 8 >= o.mix:
                srd = sX; fl = ''; so2 = so; so = '0'; self.p.add('buffer_load_dwordx4 %s, %s, 0 offen offset:%d lds' % (vo, srd, imm), 'dma', [vo, so2, 'm0', tok] + fc,
                       ['D_%s_%d' % (t.name, j)], nb=self.pace(t, j), due=max(self.pace(t, j) or -999, g0 + (j + 1) * span / len(items)), mind={tok: 6}, soft=0); so = so2
                continue
            self.p.add('buffer_load_dwordx4 %s, %s, %s offen offset:%d%s lds' % (vo, srd, so, imm, fl), 'dma', [vo, so, 'm0', tok] + fc,
                       ['D_%s_%d' % (t.name, j)], nb=self.pace(t, j), due=max(self.pace(t, j) or -999, g0 + (j + 1) * span / len(items)), mind={tok: (6 if tok != 'PRE' else 0)}, soft=0)
    def touch(self, t, nb, part=0, cls=None):
        h, i = t.arg
        for l in self.kvoff(h, i, 16384 if part == 2 else 0)[0].split('|'): self.salu(l.replace('%s', sTCH), [sTCH], [sTCH])
        if cls is not None:
            self.salu('s_bfe_u32 %s, s2, 0x%x\n    s_cmp_eq_u32 %s, %d\n    s_cselect_b32 %s, %s, 0x40000000' % (sST, (cls[1] << 16) | 3, sST, cls[0], sTCH, sTCH), [sTCH], [sTCH, sST])
        vo = vTOUCH
        if part:
            vo = vT[2]
            self.vops(['v_lshrrev_b32 %s, 8, %s' % (vo, vTOUCH), 'v_lshlrev_b32 %s, 7, %s' % (vo, vo)])
        self.p.add('buffer_load_dword %s, %s, %s, %s offen%s' % (aTOUCH, vo, sK if t.kind == 'k' else sV, sTCH, self.o.tflag), 'vld', [vo, sTCH], [], nb=nb, due=nb)
    def ctouch(self, kind, arg, nb, tok=None):
        o = self.o; nx, nw = {'A': (8, 4), 'B': (2, 16), 'C': (4, 8)}[o.map]
        t0, t1 = vT[1], vT[2]
        if kind == 'x':
            p0, lg = arg; rows = 160 // nx; stride = 896; srd = sX; fl = o.xflag; sh = sSHX; col0 = 128 * p0; ncol = min(1 << lg, 7 - p0); base = 0
        elif kind == 'wq':
            h, m0, lg = arg; rows = 448 // nw; stride = 8192; srd = sWQ; fl = o.wflag; sh = sSHW; col0 = 512 * h + 128 * m0; ncol = min(1 << lg, 4 - m0); base = 0
        else:
            m0, lg = arg; rows = 512 // nw; stride = 896; srd = sWO; fl = o.wflag; sh = sSHW; col0 = 128 * m0; ncol = min(1 << lg, 7 - m0); base = 0
        for r0 in range(0, rows, 256 >> lg):
            n = min(rows - r0, 256 >> lg)
            self.vops(['v_lshrrev_b32 %s, %d, %s' % (t0, 7 + lg, vTOUCH), 'v_bfe_u32 %s, %s, 7, %d' % (t1, vTOUCH, lg)])
            self.valu('v_cmp_gt_u32 vcc, %d, %s' % (n, t0), [t0], ['vcc'])
            self.vops(['v_mul_u32_u24 %s, %d, %s' % (t0, stride, t0), 'v_lshl_add_u32 %s, %s, 7, %s' % (t0, t1, t0)])
            self.valu('v_cndmask_b32 %s, 2.0, %s, vcc' % (t0, t0), [t0, 'vcc'], [t0])
            if ncol < (1 << lg):
                self.valu('v_cmp_gt_u32 vcc, %d, %s' % (ncol, t1), [t1], ['vcc'])
                self.valu('v_cndmask_b32 %s, 2.0, %s, vcc' % (t0, t0), [t0, 'vcc'], [t0])
            self.vops(['s_mul_i32 %s, %s, %d' % (sTCH, sh, rows * stride), 's_add_u32 %s, %s, %d' % (sTCH, sTCH, base + r0 * stride + col0)])
            self.p.add('buffer_load_dword %s, %s, %s, %s offen%s' % (aTOUCH, t0, srd, sTCH, fl), 'vld', [t0, sTCH] + ([tok] if tok else []), [], nb=nb, due=nb)
            if nb is not None: nb += 40
    def bar(self, ready=(), free=(), issue=(), span=None, lead=None, waitregs=(), nb=None):
        n = self.nbar; self.nbar += 1
        rd = ['D_%s_%d' % (t.name, j) for t in ready for j in range(t.nd)] + self.bar_ex.pop(n, []) + list(waitregs)
        wr = ['B%d' % n, 'B%d' % (n - 1), 'F%d' % n] + [t.tok for t in list(ready) + list(free)] + (['PRE'] if n == 0 else [])
        self.p.add('s_barrier' + self.tstamp(n), 'bar', rd, wr, soft=3, nb=nb)
        g = self.p.nm
        span = self.o.dma_span if span is None else span
        lead = self.o.dma_lead if lead is None else lead
        for k, (t, slot) in enumerate(issue):
            t.slot = slot
            self.dma(t, 'F%d' % n, g + lead + k * span / len(issue), span / len(issue))
        for (t, dg) in self.touch_plan.pop(n, []):
            if isinstance(t[0], str): self.ctouch(t[0], t[1], g + dg)
            else: self.touch(t[0], g + dg, t[1], t[2])
        if self.o.codetouch and n >= 4 and n % self.o.codetouch == 1:
            t = vT[2]
            self.vops(['v_lshrrev_b32 %s, 9, %s' % (t, vTOUCH), 'v_lshlrev_b32 %s, 7, %s' % (t, t), 'v_add_u32 %s, %d, %s' % (t, self.o.ct_lead, t)])
            self.salu('s_getpc_b64 s[54:55]', ['F%d' % n], [sPC], nb=g + 28, due=g + 28)
            self.p.add('global_load_dword %s, %s, %s' % (aTOUCH, t, sPC), 'vld', [t, sPC], [], nb=g + 30, due=g + 30)
        for cb in self.after_bar.pop(n, []): cb('B%d' % n)
        return n
    def exwrite(self, text, src, wbar):
        tok = 'EX%d' % self.exi; self.exi += 1
        self.p.add(text, 'ldsw', [aEXw, src], [tok])
        self.bar_ex.setdefault(wbar, []).append(tok)
    def exchange(self, src, dst, off, wbar, rbar):
        self.exwrite('ds_write_b128 %s, %s offset:%d' % (aEXw, src, off), src, wbar)
        self.after_bar.setdefault(rbar, []).append(
            lambda b: self.p.add('ds_read_b128 %s, %s offset:%d' % (dst, aEXr, off), 'ldsr', [aEXr, b], [dst]))
    def rot(self):
        r = (self.exq & 1) * 1024; self.exq += 1; return r
    def trread(self, t, r, imm):
        f = self.frag(); b = self.base(r, t)
        for jj in range(2):
            self.p.add('ds_read_b64_tr_b16 %s, %s offset:%d' % (half(f, jj), r, b + imm(jj)), 'ldsr', [r, t.tok], [half(f, jj)])
        return f
    def xread(self, t, X):
        for (qt, p, pos) in t.arg:
            if t.kind == 'x': r = aXs if qt == 's' else aXab; b = self.base(r, t)
            else: r = aEs if qt == 's' else aEab; b = 0
            for e in range(2):
                d = X[qt][2 * p + e]
                self.p.add('ds_read_b128 %s, %s offset:%d' % (d, r, b + pos + 64 * e), 'ldsr', [r, t.tok], [d])
    def lane(self, t):
        self.vops(['v_bfe_u32 %s, %s, 4, 6' % (t, vLIN)])
    def x_addr(self):
        t0, t1, t2 = vT
        self.lane(t0)
        self.vops(['v_lshrrev_b32 %s, 4, %s' % (t1, t0), 'v_bfe_u32 %s, %s, 1, 2' % (t2, t0), 'v_xor_b32 %s, %s, %s' % (t1, t1, t2),
                   'v_and_b32 %s, 7, %s' % (t2, t0), 'v_lshlrev_b32 %s, 7, %s' % (t2, t2), 'v_lshl_add_u32 %s, %s, 4, %s' % (t1, t1, t2),
                   'v_bfe_u32 %s, %s, 3, 1' % (t0, t0),
                   'v_mul_u32_u24 %s, 2112, %s' % (t2, t0), 'v_add3_u32 %s, %s, %s, %s' % (aXab, t1, t2, sW8448),
                   'v_lshlrev_b32 %s, 11, %s' % (t2, t0), 'v_add3_u32 %s, %s, %s, %s' % (aEab, t1, t2, sEXM),
                   's_and_b32 %s, %s, 2' % (sTMP, sW), 's_mul_i32 %s, %s, 8448' % (sT2, sTMP),
                   'v_mul_u32_u24 %s, 8512, %s' % (t2, t0), 'v_add3_u32 %s, %s, %s, %s' % (aXs, t1, t2, sT2),
                   's_mul_i32 %s, %s, %d' % (sT2, sTMP, EXW), 's_add_u32 %s, %s, %d' % (sT2, sT2, EX),
                   'v_mul_u32_u24 %s, %d, %s' % (t2, EXW, t0), 'v_add3_u32 %s, %s, %s, %s' % (aEs, t1, t2, sT2)])
        for r in (aXab, aXs, aEab, aEs): self.pair[r] = 0
    def k_addr(self):
        t0, t1, t2 = vT
        self.lane(t0)
        self.vops(['v_and_b32 %s, 15, %s' % (t1, t0), 'v_mul_u32_u24 %s, 1056, %s' % (t1, t1), 'v_and_b32 %s, 48, %s' % (t0, t0),
                   's_mul_i32 %s, %s, 16960' % (sTMP, sPAR), 'v_add3_u32 %s, %s, %s, %s' % (aK[0][0], t0, t1, sTMP),
                   's_sub_u32 %s, 16960, %s' % (sTMP, sTMP), 'v_add3_u32 %s, %s, %s, %s' % (aK[1][1], t0, t1, sTMP),
                   's_mul_i32 %s, %s, 16832' % (sT2, sPAR), 's_add_u32 %s, %s, 64' % (sT2, sT2), 'v_add3_u32 %s, %s, %s, %s' % (aK[0][1], t0, t1, sT2),
                   's_sub_u32 %s, 16960, %s' % (sT2, sT2), 'v_add3_u32 %s, %s, %s, %s' % (aK[1][0], t0, t1, sT2)])
        for r in aK[0] + aK[1]: self.pair[r] = 0
    def wo_rowpat(self):
        t0, t1, t2 = vT
        self.lane(t0)
        self.vops(['v_and_b32 %s, 16, %s' % (t1, t0), 'v_bfe_u32 %s, %s, 5, 1' % (t2, t0), 'v_lshl_add_u32 %s, %s, 3, %s' % (t1, t2, t1),
                   'v_bfe_u32 %s, %s, 3, 1' % (t2, t0), 'v_add_u32 %s, %s, %s' % (t1, t1, t2), 'v_lshl_add_u32 %s, %s, 1, %s' % (t1, sW, t1),
                   'v_mul_u32_u24 %s, 896, %s' % (t1, t1), 'v_and_b32 %s, 7, %s' % (t0, t0), 'v_lshl_add_u32 %s, %s, 4, %s' % (vWROW, t0, t1),
                   's_mul_i32 %s, %s, 4224' % (sTMP, sPAR), 's_sub_u32 %s, 4224, %s' % (sT2, sTMP)])
        for c in range(2):
            self.vops(['v_add_u32 %s, %s, %s' % (aW[1][c], sT2, aW[0][c]), 'v_add_u32 %s, %s, %s' % (aW[0][c], sTMP, aW[0][c])])
            self.pair[aW[1][c]] = self.pair.get(aW[0][c], 0)
    def qtile(self, t, X, Q, mid=None, acc=None):
        h, m, hf = t.arg
        acc = acc or self.qacc; nk = 8 if hf else 6
        for dt in range(4):
            if mid and dt in mid: mid[dt]()
            fr = [self.trread(t, aW[0][dt >> 1], lambda jj, ks=ks: ks * 4224 + jj * 256 + 8 * (dt & 1)) for ks in range(nk)]
            for qt in (('s', 'a', 'b') if dt < 2 else ('a', 'b')):
                A = acc[(dt, qt)]
                for ks in range(nk):
                    self.mfma(A, fr[ks], X[qt][6 * hf + ks], '0' if (hf == 0 and ks == 0) else A, (fr + ['B1']) if self.p.nm == 0 else ())
                if hf == 1:
                    for i in range(4): self.valu('v_mul_f32 %s, %s, %s' % (reg(A, i), sSCALE, reg(A, i)), [sSCALE, reg(A, i)], [reg(A, i)])
                    tq = 2 * m + (dt >> 1); dst = Q[qt][tq]
                    D = dst if dst[0] == 'v' else acc[(dt & 2, qt)]
                    for i in range(2):
                        dd = reg(D, 2 * (dt & 1) + i)
                        self.valu('v_cvt_pk_bf16_f32 %s, %s, %s' % (dd, reg(A, 2 * i), reg(A, 2 * i + 1)), [reg(A, 2 * i), reg(A, 2 * i + 1)], [dd])
                        if dst[0] == 'a': self.valu('v_accvgpr_write_b32 %s, %s' % (reg(dst, 2 * (dt & 1) + i), dd), [dd], [reg(dst, 2 * (dt & 1) + i)])
                    if (dt & 1) and qt == 's': self.exchange(D, Q['s'][tq + 1], self.rot(), self.nbar, self.nbar)
    def qk(self, i, t, Q, rbar):
        P = self.P[i & 1]
        for ks in range(2):
            for jj in range(2):
                fr = []
                for u in range(8):
                    f = self.frag(); r = aK[ks][u & 1]; b = self.base(r, t)
                    self.p.add('ds_read_b128 %s, %s offset:%d' % (f, r, b + jj * 512 + 128 * (u >> 1)), 'ldsr', [r, t.tok], [f])
                    fr.append(f)
                for qt in (('s', 'a', 'b') if ks == 0 else ('a', 'b')):
                    S = SQ[self.si % len(SQ)]; self.si += 1
                    for u in range(8): self.mfma(S, fr[u], Q[qt][u], NEGM[qt] if u == 0 else S)
                    for e in range(4): self.p.add('v_exp_f32 %s, %s' % (reg(S, e), reg(S, e)), 'trans', [reg(S, e)], [reg(S, e)])
                    D = P[qt][ks]
                    for e in range(2):
                        self.valu('v_cvt_pk_bf16_f32 %s, %s, %s' % (reg(D, 2 * jj + e), reg(S, 2 * e), reg(S, 2 * e + 1)),
                                  [reg(S, 2 * e), reg(S, 2 * e + 1)], [reg(D, 2 * jj + e)])
                    for e in range(4): self.valu('v_add_f32 %s, %s, %s' % (vL[qt], vL[qt], reg(S, e)), [vL[qt], reg(S, e)], [vL[qt]])
                    if qt == 's' and jj == 1: self.exchange(D, P['s'][1], self.rot(), rbar, rbar)
    def xreduce(self, r, op, t):
        for sw in ('32', '16'):
            self.valu('v_mov_b32 %s, %s' % (t, r), [r], [t])
            self.p.add('v_permlane%s_swap_b32 %s, %s' % (sw, r, t), 'trans', [r, t], [r, t], swap=True)
            self.valu('%s %s, %s, %s' % (op, r, r, t), [r, t], [r])
    def lcheck(self, lo, hi):
        self.valu('v_cmp_gt_f32 %s, %s, %s' % (sCMP, sLO, lo), [sLO, lo], [sCMP])
        self.salu('s_or_b64 %s, %s, %s' % (sBAD, sBAD, sCMP), [sBAD, sCMP], [sBAD])
        self.valu('v_cmp_lt_f32 %s, %s, %s' % (sCMP, sHI, hi), [sHI, hi], [sCMP])
        self.salu('s_or_b64 %s, %s, %s' % (sBAD, sBAD, sCMP), [sBAD, sCMP], [sBAD])
    def lfinish(self, h, btok):
        T = SQ[self.si % len(SQ)]
        t = [reg(T, e) for e in range(4)]
        for k, qt in enumerate('sab'): self.xreduce(vL[qt], 'v_add_f32', t[k])
        off = self.rot(); n7 = self.nbar
        tok = 'EX%d' % self.exi; self.exi += 1
        self.p.add('ds_write_b32 %s, %s offset:%d' % (aEXw, vL['s'], off), 'ldsw', [aEXw, vL['s'], btok], [tok])
        self.bar_ex.setdefault(n7, []).append(tok)
        self.vops(['v_min_f32 %s, %s, %s' % (t[1], vL['a'], vL['b']), 'v_max_f32 %s, %s, %s' % (t[2], vL['a'], vL['b'])])
        for x in 'ab': self.p.add('v_rcp_f32 %s, %s' % (vL[x], vL[x]), 'trans', [vL[x]], [vL[x]])
        def fin(b):
            self.p.add('ds_read_b32 %s, %s offset:%d' % (t[0], aEXr, off), 'ldsr', [aEXr, b], [t[0]])
            self.vops(['v_add_f32 %s, %s, %s' % (vL['s'], vL['s'], t[0]),
                       'v_min_f32 %s, %s, %s' % (t[1], t[1], vL['s']), 'v_max_f32 %s, %s, %s' % (t[2], t[2], vL['s'])])
            self.p.add('v_rcp_f32 %s, %s' % (vL['s'], vL['s']), 'trans', [vL['s']], [vL['s']])
            self.lcheck(t[1], t[2])
            if h == 1:
                off2 = self.rot()
                self.salu('s_or_b32 s46, s46, s47', [sBAD], [sBAD])
                self.salu('s_andn2_b32 s46, s46, %s' % sMODE, [sBAD, sMODE], [sBAD])
                self.valu('v_mov_b32 %s, s46' % t[0], [sBAD], [t[0]])
                self.exwrite('ds_write_b32 %s, %s offset:%d' % (aEXw, t[0], off2), t[0], n7 + 1)
                def vote(b3):
                    t2 = vT[1]
                    self.vops(['v_bfe_u32 %s, %s, 4, 2' % (t2, vLIN), 'v_mul_u32_u24 %s, %d, %s' % (t2, EXW, t2), 'v_add_u32 %s, %d, %s' % (t2, EX + off2, t2)])
                    self.p.add('ds_read_b32 %s, %s' % (t2, t2), 'ldsr', [t2, b3], [t2])
                    self.valu('v_cmp_ne_u32 vcc, 0, %s' % t2, [t2], ['vcc'])
                    self.p.add('s_cmp_lg_u64 vcc, 0\n    s_cbranch_scc1 L_restart', 'br', ['vcc'], ['OKGO'], mind={'vcc': 5})
                self.after_bar.setdefault(n7 + 1, []).append(vote)
        self.after_bar.setdefault(n7, []).append(fin)
    def pv(self, i, t, O, OB):
        P = self.P[i & 1]
        for dt in range(16):
            c = (dt >> 1) & 1
            f = [self.trread(t, aV[ks][c], lambda jj: jj * 512 + 128 * (dt >> 2) + 32 * (dt & 1)) for ks in range(2)]
            seq = [('a', 0), ('a', 1), ('b', 1), ('b', 0)] + ([('s', 0), ('s', 1)] if c == 0 else [])
            for k, (qt, ks) in enumerate(seq):
                A = O[qt][dt]
                self.mfma(A, f[ks], P[qt][ks], '0' if (i == 0 and k % 2 == 0) else A)
            if i == 7 and (dt & 1):
                for qt in (('a', 'b', 's') if c == 0 else ('a', 'b')):
                    D = OB[qt][dt >> 1]
                    for jj in range(2):
                        A = O[qt][dt - 1 + jj]
                        if A[0] == 'a':
                            T = D if jj == 0 else list(NEGM.values())[self.tq % 3]
                            if jj: self.tq += 1
                            for e in range(4): self.valu('v_accvgpr_read_b32 %s, %s' % (reg(T, e), reg(A, e)), [reg(A, e)], [reg(T, e)])
                            A = T
                        for e in range(4): self.valu('v_mul_f32 %s, %s, %s' % (reg(A, e), vL[qt], reg(A, e)), [vL[qt], reg(A, e)], [reg(A, e)])
                        for e in range(2):
                            self.valu('v_cvt_pk_bf16_f32 %s, %s, %s' % (reg(D, 2 * jj + e), reg(A, 2 * e), reg(A, 2 * e + 1)),
                                      [reg(A, 2 * e), reg(A, 2 * e + 1)], [reg(D, 2 * jj + e)])
                    if qt == 's':
                        nb = self.nbar + self.osdelay
                        self.exchange(D, OB['s'][(dt >> 1) + 1], 2048 + (dt >> 2) * 1024, nb, nb)
    def hookop(self, h, Q, tmp):
        allq = [x for qt in 'sab' for x in Q[qt]]
        self.p.add('s_cmp_lg_u32 %s, 0\n    s_cbranch_scc1 L_hook%d\nL_ret%d:' % (sMODE, h, h), 'br', allq + [sMODE],
                   list(NEGM.values()) + list(vL.values()) + vT + SQ[:3] + tmp + [sTMP, sHK])
        for qt in 'sab': self.valu('v_mov_b32 %s, 0' % vL[qt], [], [vL[qt]])
    def otile(self, t, OB):
        h, m = t.arg; acc = self.oacc
        if 0 < m < self.o.opre: acc = dict(zip(self.oacc.keys(), ABIG[10 * (m - 1): 10 * m]))
        for nt in range(4):
            fr = [self.trread(t, aW[u & 1][nt >> 1], lambda jj, u=u: (u >> 1) * 8448 + jj * 256 + 8 * (nt & 1)) for u in range(8)]
            for qt in (('a', 'b', 's') if nt < 2 else ('a', 'b')):
                A = acc[(nt, qt)]
                for u in range(8): self.mfma(A, fr[u], OB[h][qt][u], '0' if (h == 0 and u == 0) else A)
                if h == 1:
                    D = self.oacc[(nt & 2, qt)]
                    if A[0] == 'a':
                        T = self.oacc[(nt, qt)]
                        for e in range(4): self.valu('v_accvgpr_read_b32 %s, %s' % (reg(T, e), reg(A, e)), [reg(A, e)], [reg(T, e)])
                        A = T
                    for e in range(2):
                        self.valu('v_cvt_pk_bf16_f32 %s, %s, %s' % (reg(D, 2 * (nt & 1) + e), reg(A, 2 * e), reg(A, 2 * e + 1)),
                                  [reg(A, 2 * e), reg(A, 2 * e + 1)], [reg(D, 2 * (nt & 1) + e)])
                    if nt & 1:
                        c = 5 * m + {'a': 0, 'b': 1, 's': 2}[qt] + 3 * (nt >> 1)
                        self.salu('s_mov_b32 %s, %d' % (sST, c * 8192), [], [sST])
                        self.p.add('buffer_store_dwordx4 %s, %s, %s, %s offen%s' % (D, vP, sWS, sST, self.o.stflag), 'vst',
                                   [D, vP, sST, 'OKGO'], ['PST%d' % c], due=self.p.nm + 10)
    def out_addr(self):
        t0 = vT[0]
        self.lane(t0)
        self.vops(['v_lshlrev_b32 %s, 4, %s' % (vC, t0), 's_lshl_b32 %s, %s, 10' % (sTMP, sJ), 'v_add_u32 %s, %s, %s' % (vP, sTMP, vC),
                   'v_and_b32 %s, 15, %s' % (vO, t0), 'v_mul_u32_u24 %s, 1792, %s' % (vO, vO), 'v_lshlrev_b32 %s, 2, %s' % (vF, t0),
                   'v_and_b32 %s, 48, %s' % (t0, t0), 'v_add_u32 %s, %s, %s' % (vO, vO, t0)])
    def job_addr(self):
        for r in range(5):
            d = sJOB[r]
            txt = ['s_add_u32 {d}, {j}, %d' % (8 * r), 's_mul_i32 {t}, {d}, 52', 's_lshr_b32 {t}, {t}, 8', 's_mul_i32 {u}, {t}, 5',
                   's_sub_u32 {u}, {d}, {u}', 's_lshl_b32 {t}, {t}, 7', 's_cmp_ge_u32 {d}, 35', 's_cselect_b32 {d}, 0x40000000, {ob}',
                   's_add_u32 {d}, {d}, {t}', 's_cmp_ge_u32 {u}, 3', 's_cselect_b32 {t}, 1, 0', 's_cselect_b32 {h}, 3, 0', 's_sub_u32 {u}, {u}, {h}',
                   's_xor_b32 {t}, {t}, {par}', 's_lshl_b32 {t}, {t}, 6', 's_add_u32 {d}, {d}, {t}',
                   's_lshl_b32 {t}, {par}, 1', 's_add_u32 {t}, {t}, {u}', 's_cmp_eq_u32 {u}, 2', 's_cselect_b32 {t}, 4, {t}',
                   's_mul_i32 {t}, {t}, 28672', 's_add_u32 {d}, {d}, {t}']
            txt = [x.format(d=d, j=sJ, t=sTMP, u=sT2, h=sHK, ob=sOB, par=sPAR) for x in txt]
            k = 0
            while k < len(txt):
                n = 1
                if txt[k].startswith('s_cmp'):
                    while k + n < len(txt) and txt[k + n].startswith('s_cselect'): n += 1
                self.salu('\n    '.join(txt[k:k + n]), [d, sTMP, sT2, sHK], [d, sTMP, sT2, sHK]); k += n
    def publish(self, val, chunks, soft, nb=None):
        t = vT[1]
        self.valu('v_mov_b32 %s, %d' % (t, val), [], [t])
        self.vops(['v_lshlrev_b32 %s, 2, %s' % (vT[2], vC), 's_lshl_b32 %s, %s, 2' % (sTCH, sJ), 's_add_u32 %s, %s, %d' % (sTCH, sTCH, PREG)])
        self.p.add('buffer_store_dword %s, %s, %s, %s offen sc1' % (t, vT[2], sWS, sTCH), 'vst', [t, vT[2], sTCH, 'PUB'] + ['PST%d' % c for c in chunks],
                   [], soft=soft, nb=nb, due=nb)
    def poll(self, name, load, dst, check, nb, soft, rd):
        self.p.add(load, 'vld', rd, [dst, 'PUB'], nb=nb, due=nb)
        self.p.add(check + '\n    s_cbranch_scc0 L_spin%s\nL_back%s:' % (name, name), 'br', [dst] + list(rd), [dst, 'vcc', sHK, 'GO' + name], soft=soft,
                   due=None if nb is None else nb + soft)
        self.spins.append((name, load, check))
    def pollflags(self, name, val, nb, soft, rd=()):
        t = vT[0]
        self.salu('s_mov_b32 %s, %d' % (sT2, PREG), [], [sT2])
        self.poll(name, 'buffer_load_dword %s, %s, %s, %s offen sc1' % (t, vF, sWS, sT2), t,
                  'v_cmp_le_u32 vcc, %d, %s\n    s_nop 4\n    s_cmp_eq_u32 vcc_lo, 0xff' % (val, t), nb, soft, [vF, sT2] + list(rd))
    def jobload(self, r, L, go, nb=None, step=0):
        for jj in range(8):
            if jj % 4 == 0:
                so = self.soff()
                self.salu('s_lshl_b32 %s, %s, 13' % (so, sJ), [sJ], [so]); self.salu('s_add_u32 %s, %s, %d' % (so, so, r * 65536 + jj * 1024), [so], [so])
            pos = None if nb is None else nb + jj * step
            self.p.add('buffer_load_dwordx4 %s, %s, %s, %s offen offset:%d sc1' % (L[jj], vC, sWS, so, (jj & 3) * 1024), 'vld', [vC, so, go], [L[jj]], nb=pos, due=pos)
    def jobsum(self, r, L, T):
        A = [reg(T[0], e) for e in range(4)] + [reg(T[1], e) for e in range(4)]
        for jj in range(8):
            for e in range(4):
                src = reg(L[jj], e); t0, t1 = reg(T[2], (2 * e) & 3), reg(T[2], (2 * e + 1) & 3)
                if src[0] == 'a':
                    self.valu('v_accvgpr_read_b32 %s, %s' % (t1, src), [src], [t1]); src = t1
                if jj == 0: self.vops(['v_lshlrev_b32 %s, 16, %s' % (A[2 * e], src), 'v_and_b32 %s, 0xffff0000, %s' % (A[2 * e + 1], src)])
                else: self.vops(['v_lshlrev_b32 %s, 16, %s' % (t0, src), 'v_and_b32 %s, 0xffff0000, %s' % (t1, src),
                                 'v_add_f32 %s, %s, %s' % (A[2 * e], A[2 * e], t0), 'v_add_f32 %s, %s, %s' % (A[2 * e + 1], A[2 * e + 1], t1)])
        for e in range(4): self.vops(['v_cvt_pk_bf16_f32 %s, %s, %s' % (A[e], A[2 * e], A[2 * e + 1])])
        self.p.add('buffer_store_dwordx4 %s, %s, %s, %s offen' % (T[0], vO, sOUT, sJOB[r]), 'vst', [T[0], vO, sJOB[r]], [])
    def build(self):
        o = self.o
        W = [[Tile('wq%d_%d' % (h, k), 'wq', (h, k >> 1, k & 1)) for k in range(8)] for h in range(2)]
        def attn_tiles(h):
            l = [('k', 0)]
            for i in range(1, 8): l += [('k', i), ('v', i - 1)]
            return [Tile('%s%d_%d' % (k, h, i), k, (h, i)) for k, i in l + [('v', 7)]]
        A = [attn_tiles(h) for h in range(2)]
        WO = [Tile('wo%d_%d' % (m, h), 'wo', (h, m)) for h in range(2) for m in range(o.opre)] + [Tile('wo%d_%d' % (m, h), 'wo', (h, m)) for m in range(o.opre, 7) for h in range(2)]
        def xt(name, p):
            return (Tile(name + 'A', 'x', [('a', p, 0), ('b', p, 1024), ('s', p, 5248), ('a', p + 1, 4224), ('s', p + 1, 7360)]),
                    Tile(name + 'B', 'x', [('b', p + 1, 0), ('a', p + 2, 1024), ('b', p + 2, 4224), ('s', p + 2, 5248)]))
        XA0, XB0 = xt('x0', 0); XA1, XB1 = xt('x1', 4); XA2, XB2 = xt('x2', 4)
        XE = Tile('xe', 'xe', [('a', 3, 2048), ('b', 3, 3072), ('s', 3, 6144)])
        self.P = [{'a': [PQ[5 * b], PQ[5 * b + 1]], 'b': [PQ[5 * b + 2], PQ[5 * b + 3]], 's': [PQ[5 * b + 4], PX[b]]} for b in range(2)]
        self.qacc = dict(zip([(0, 's'), (0, 'a'), (0, 'b'), (1, 's'), (1, 'a'), (1, 'b'), (2, 'a'), (2, 'b'), (3, 'a'), (3, 'b')], PQ))
        self.oacc = dict(zip([(0, 'a'), (0, 'b'), (0, 's'), (1, 'a'), (1, 'b'), (1, 's'), (2, 'a'), (2, 'b'), (3, 'a'), (3, 'b')], PQ))
        def xmap(lst): return {qt: [lst[3 * ks + k] for ks in range(14)] for k, qt in enumerate('sab')}
        X0 = xmap(ABIG[:18] + BIG[:24]); X1 = xmap(ABIG)
        Q0 = {qt: ABIG[18 + 8 * k: 26 + 8 * k] for k, qt in enumerate('sab')}
        def omap(lst):
            O = {'a': [None] * 16, 'b': [None] * 16, 's': [None] * 16}; k = 0
            for u in range(8):
                for qt in (('s', 'a', 'b') if u % 2 == 0 else ('a', 'b')):
                    O[qt][2 * u] = lst[k]; O[qt][2 * u + 1] = lst[k + 1]; k += 2
            return O
        O0 = omap(BIG); O1 = omap(ABIG[:40])
        OB0 = {qt: [O0[qt][2 * u] for u in range(8)] for qt in 'sab'}
        Q1 = {qt: [O0[qt][2 * u + 1] for u in range(8)] for qt in 'sab'}
        for u in range(1, 8, 2): OB0['s'][u] = OPART0[u >> 1]; Q1['s'][u] = QPART1[u >> 1]
        OB1 = Q1
        self.maps = dict(Q0=Q0, Q1=Q1)
        QB = [3, 27]
        self.touch_plan = {}
        for h in range(2):
            for (at, tile, part) in (o.touch, o.touch1)[h]:
                for k in range(1 << o.tcls):
                    a2 = at + k * o.tdt
                    self.touch_plan.setdefault(QB[h] + int(a2 // 1), []).append(((A[h][tile], part, (k, o.tcls) if o.tcls else None), int((a2 % 1) * 70) - 8))
        for spec in o.t2.split(','):
            if spec == 'none': continue
            at, a0, lg = spec.split(':'); at = float(at)
            self.touch_plan.setdefault(int(at // 1), []).append((('wq', (0, int(a0), int(lg))), int((at % 1) * 70)))
        if o.wtouch & 2:
            self.touch_plan.setdefault(QB[1] - 4, []).append((('wq', (1, 0, 2)), 68))
        if o.wtouch & 4:
            for spec in o.t3.split(','):
                at, a0, lg = spec.split(':'); at = float(at)
                self.touch_plan.setdefault(QB[1] + 24 + int(at // 1), []).append((('wo', (int(a0), int(lg))), int((at % 1) * 70)))
        def dstamp():
            if o.pstamp == 2:
                k = STAMP0 + 2 + 2 * self.nstamp; self.nstamp += 1
                self.salu('s_waitcnt vmcnt(0)\n    s_memtime s[%d:%d]' % (k, k + 1), ['PRE'], ['m0', sTCH] + vT)
        dstamp()
        for spec in o.t1.split(','):
            if spec == 'none': continue
            kind, a0, lg = spec.split(':')
            self.ctouch(kind, (int(a0), int(lg)) if kind == 'x' else (0, int(a0), int(lg)), None, 'PRE'); dstamp()
        for t, s in ((XA0, 0), (XB0, 2), (W[0][0], 1), (XE, None), (XA1, 3)):
            t.slot = s; self.dma(t, 'PRE', -100, 0); dstamp()
        self.x_addr()
        self.setfr(FR + SQ + PX)
        self.bar(ready=[XA0, XB0, W[0][0]])
        self.xread(XA0, X0); self.xread(XB0, X0)
        W00, W01, W10, W11 = W[0][:4]
        acc2 = dict(zip(self.qacc.keys(), BIG[24:34]))
        self.bar(free=[XA0, XB0], issue=[(W10, 0), (XB1, 2)], span=54, lead=-1, waitregs=ABIG[:18])
        def mid0():
            self.bar(ready=[XE, XA1], nb=o.mid0); self.xread(XE, X0); self.xread(XA1, X0)
        self.qtile(W00, X0, Q0, {1: mid0})
        self.bar(ready=[W10], free=[W00, XA1], issue=[(W01, 1), (W11, 3)], span=66, lead=-6, nb=o.nb1)
        def mid1():
            self.bar(ready=[XB1], nb=60 + o.mid1); self.xread(XB1, X0)
        self.qtile(W10, X0, Q0, {1: mid1}, acc2)
        self.bar(ready=[W01], free=[W10, XB1], issue=[(W[0][4], 0), (W[0][5], 2)], span=76, lead=2, nb=o.nb2)
        self.k_addr()
        self.vops(['v_mov_b32 %s, 0' % vT[1], 'v_bfe_u32 %s, %s, 4, 6' % (vT[2], vLIN), 'v_lshlrev_b32 %s, 6, %s' % (vT[2], vT[2]),
                   's_lshl_b32 %s, %s, 2' % (sTCH, sJ), 's_add_u32 %s, %s, %d' % (sTCH, sTCH, PREG)])
        self.p.add('buffer_store_dword %s, %s, %s, %s offen sc1' % (vT[1], vT[2], sWS, sTCH), 'vst', [vT[1], vT[2], sTCH], ['FLAG0'], due=self.p.nm + 30)
        self.bar_ex.setdefault(QB[0] + 10, []).append('FLAG0')
        def announce(b):
            self.valu('v_mov_b32 %s, 1' % vT[1], [], [vT[1]])
            self.p.add('buffer_store_byte %s, %s, %s, %s offen sc1' % (vT[1], vTOUCH, sDBG, sJ), 'vst', [vT[1], vTOUCH, sJ, b], [], due=self.p.nm + 40)
        self.after_bar.setdefault(QB[0] + 10, []).append(announce)
        self.qtile(W01, X0, Q0)
        def stream(seq, k):
            self.bar(ready=[seq[k]], free=[seq[k - 1]], issue=[(seq[k + 3], seq[k - 1].slot)] if k + 3 < len(seq) else [])
        def attention(h, seq, k0, Q, O, OB, tmp, tail):
            stream(seq, k0)
            self.setfr(FR + ([QPART1[2], QPART1[3], AQ(62)] if h == 0 else [ABIG[40], ABIG[41], AQ(62)])[:o.xfr])
            self.hookop(h, Q, tmp)
            self.stamp()
            if h == 1: self.job_addr(); self.wo_rowpat()
            self.qk(0, seq[k0], Q, self.nbar)
            k = k0 + 1
            for i in range(1, 8):
                stream(seq, k); self.qk(i, seq[k], Q, self.nbar + (1 if i < 7 else 0)); k += 1
                stream(seq, k)
                if i == 7:
                    self.lfinish(h, 'B%d' % (self.nbar - 1)); tail(0)
                self.pv(i - 1, seq[k], O, OB); k += 1
            tail(1)
            self.pv(7, seq[k], O, OB)
            self.stamp()
        seq0 = [W00, W10, W01] + W[0][3:] + A[0] + [XA2, XB2]
        for k in range(3, 8):
            stream(seq0, k); self.qtile(W[0][k], X0, Q0, None, acc2 if k == 3 else None)
        V6, V7 = A[0][14], A[0][15]
        def tail0(st):
            if st == 0:
                self.x_addr(); self.xread(XE, X1)
            else:
                self.bar(ready=[V7, XA2], free=[V6, XE], issue=[(W[1][0], V6.slot)], span=30); self.xread(XA2, X1)
        self.osdelay = 2
        attention(0, seq0, 8, Q0, O0, OB0, BIG[:8], tail0)
        self.setfr(FR + SQ + PX)
        self.bar(ready=[W[1][0], XB2], free=[V7, XA2], issue=[(W[1][1], XA2.slot), (W[1][2], V7.slot)], span=64, lead=-10)
        self.xread(XB2, X1)
        self.qtile(W[1][0], X1, Q1)
        self.bar(ready=[W[1][1]], free=[W[1][0], XB2], issue=[(W[1][3], W[1][0].slot), (W[1][4], XB2.slot)], span=76, lead=-2, nb=self.p.nm - 14)
        self.k_addr()
        self.qtile(W[1][1], X1, Q1)
        seq1 = W[1] + A[1] + WO
        for k in range(2, 8):
            stream(seq1, k); self.qtile(W[1][k], X1, Q1)
        def tail1(st):
            if st == 0: self.out_addr()
            else: stream(seq1, 23)
        self.osdelay = o.opre
        attention(1, seq1, 8, Q1, O1, OB1, ABIG[:8], tail1)
        self.setfr(FR + SQ + PX)
        LA = [ABIG[8 * r: 8 * r + 8] for r in range(3)]
        for k in range(14):
            stream(seq1, 24 + k)
            g = self.p.nm
            if k == 6:
                d = half(NEGM['a'], 0)
                self.poll('R', 'buffer_load_dwordx2 %s, off, %s, 0 sc1' % (d, sDBG), d,
                          'v_and_b32 %s, %s, %s\n    v_cmp_eq_u32 vcc, 0x01010101, %s\n    s_nop 4\n    s_cmp_eq_u32 vcc_lo, -1' % (reg(d, 0), reg(d, 0), reg(d, 1), reg(d, 0)),
                          g + 10, 100, [])
            if k == 10: self.publish(1, range(24), o.pub_soft, g + o.pub_at)
            if k == 12:
                self.pollflags('A', 1, g + o.poll_at, o.poll_soft, ['GOR'])
                for r in range(3): self.jobload(r, LA[r], 'GOA', g + o.poll_at + o.poll_soft + 2 + 32 * r, 4)
            self.otile(WO[k], [OB0, OB1])
        self.stamp()
        T3 = list(NEGM.values())
        self.jobsum(0, LA[0], T3)
        self.publish(2, range(24, 35), 0)
        self.jobsum(1, LA[1], BIG[0:3]); self.jobsum(2, LA[2], BIG[3:6])
        self.pollflags('B', 2, None, 0)
        self.jobload(3, BIG[8:16], 'GOB'); self.jobload(4, BIG[16:24], 'GOB')
        self.jobsum(3, BIG[8:16], BIG[24:27]); self.jobsum(4, BIG[16:24], BIG[27:30])
        assert not self.bar_ex and not self.after_bar and not self.touch_plan, (self.bar_ex, self.after_bar.keys(), self.touch_plan.keys())
        return self.p.schedule()
    def hook(self, h):
        Q = self.maps['Q%d' % h]; F = BIG[:8] if h == 0 else ABIG[:8]
        a = Asm(); t0, t1, t2 = vT
        a.label('L_hook%d' % h)
        a('v_bfe_u32 %s, %s, 4, 6' % (t2, vLIN))
        a('v_and_b32 %s, 15, %s\nv_lshlrev_b32 %s, 9, %s' % (t0, t2, t0, t0))
        a('v_and_b32 %s, 48, %s\nv_add_u32 %s, %s, %s' % (t2, t2, t0, t0, t2))
        a('s_lshl_b32 %s, %s, 6' % (sTMP, sPAR))
        a('v_add_u32 %s, %s, %s\nv_xor_b32 %s, 64, %s' % (t0, sTMP, t0, t1, t0))
        for qt in 'sab': a('v_mov_b32 %s, 0xff800000' % vL[qt])
        a('s_mov_b32 %s, %d' % (sHK, h * 262144))
        a.label('L_hookloop%d' % h)
        for t in range(8): a('buffer_load_dwordx4 %s, %s, %s, %s offen offset:%d' % (F[t], (t0, t1)[t & 1], sK, sHK, 128 * (t >> 1)))
        a('s_waitcnt vmcnt(0)')
        for k, qt in enumerate('sab'):
            for t in range(8): a('v_mfma_f32_16x16x32_bf16 %s, %s, %s, %s' % (SQ[k], F[t], Q[qt][t], '0' if t == 0 else SQ[k]))
        a('s_nop 7\ns_nop 1')
        for k, qt in enumerate('sab'):
            a('v_max3_f32 %s, %s, %s, %s' % (vL[qt], vL[qt], reg(SQ[k], 0), reg(SQ[k], 1)))
            a('v_max3_f32 %s, %s, %s, %s' % (vL[qt], vL[qt], reg(SQ[k], 2), reg(SQ[k], 3)))
        a('s_add_u32 %s, %s, 8192\ns_cmp_lt_u32 %s, %d\ns_cbranch_scc1 L_hookloop%d' % (sHK, sHK, sHK, (h + 1) * 262144, h))
        for qt in 'sab':
            for sw in ('32', '16'):
                a('v_mov_b32 %s, %s\ns_nop 1\nv_permlane%s_swap_b32 %s, %s\ns_nop 1\nv_max_f32 %s, %s, %s' % (t2, vL[qt], sw, vL[qt], t2, vL[qt], vL[qt], t2))
            for e in range(4): a('v_sub_f32 %s, 0, %s' % (reg(NEGM[qt], e), vL[qt]))
        a('s_nop 2\ns_branch L_ret%d' % h)
        return a.text()
    def spincode(self):
        a = Asm()
        for name, load, check in self.spins:
            a.label('L_spin' + name)
            a('s_mov_b32 %s, 0x40000' % sHK)
            a.label('L_spinloop' + name)
            a(load); a('s_waitcnt vmcnt(0)'); a(check)
            a('s_cbranch_scc1 L_back%s\ns_sub_u32 %s, %s, 1\ns_cmp_lg_u32 %s, 0\ns_cbranch_scc1 L_spinloop%s\ns_branch L_back%s' % (name, sHK, sHK, sHK, name, name))
        return a.text()

def prologue(o):
    a = Asm()
    a("""
    s_cmp_ge_u32 s2, 256
    s_cbranch_scc1 L_end
    EARLY_TOUCH
    s_and_b32 s61, s2, 7
    s_lshr_b32 s62, s2, 3
    s_lshr_b32 s63, s61, 2
    s_mul_i32 s50, s63, 40
    s_add_u32 s56, s0, s50
    s_addc_u32 s57, s1, 0
    s_load_dwordx2 s[8:9], s[56:57], 0
    s_load_dwordx2 s[20:21], s[56:57], 24
    s_load_dwordx2 s[12:13], s[56:57], 8
    s_load_dwordx2 s[16:17], s[56:57], 16
    s_load_dwordx2 s[24:25], s[56:57], 32
    s_load_dwordx2 s[28:29], s[0:1], 96
    s_load_dwordx2 s[4:5], s[0:1], 80
    s_load_dwordx2 s[96:97], s[0:1], 88
    """)
    if o.stamps == 1: a('s_memrealtime s[64:65]\ns_memtime s[66:67]')
    if o.stamps == 2: a('s_memtime s[64:65]')
    if o.map == 'B': a('s_and_b32 s38, s61, 3\ns_lshl_b32 s38, s38, 1\ns_and_b32 s50, s62, 1\ns_add_u32 s38, s38, s50\ns_lshr_b32 s60, s62, 1')
    if o.map == 'C': a('s_and_b32 s38, s61, 1\ns_lshl_b32 s38, s38, 2\ns_and_b32 s50, s62, 3\ns_add_u32 s38, s38, s50\ns_and_b32 s60, s61, 2\ns_lshl_b32 s60, s60, 2\ns_lshr_b32 s50, s62, 2\ns_add_u32 s60, s60, s50')
    if o.map == 'A': a('s_and_b32 s38, s62, 7\ns_and_b32 s60, s61, 3\ns_lshl_b32 s60, s60, 2\ns_lshr_b32 s50, s62, 3\ns_add_u32 s60, s60, s50')
    nx, nw = {'A': (8, 4), 'B': (2, 16), 'C': (4, 8)}[o.map]
    a('s_and_b32 s61, s38, %d\ns_and_b32 s62, s60, %d' % (nx - 1, nw - 1))
    a("""
    v_lshrrev_b32 v21, 6, v0
    v_lshlrev_b32 v15, 7, v0
    v_readfirstlane_b32 s32, v21
    v_and_b32 v21, 63, v0
    s_mov_b32 s43, 0
    s_mov_b32 s10, 143360
    s_mov_b32 s11, 0x20000
    s_mov_b32 s14, 524288
    s_mov_b32 s15, 0x20000
    s_mov_b32 s18, 524288
    s_mov_b32 s19, 0x20000
    s_mov_b32 s23, 0x20000
    s_mov_b32 s26, 458752
    s_mov_b32 s27, 0x20000
    s_mov_b32 s31, 0x20000
    s_mov_b32 s6, 4587520
    s_mov_b32 s7, 0x20000
    s_mov_b32 s98, 16
    s_mov_b32 s99, 0x20000
    s_and_b32 s33, s32, 1
    s_mul_i32 s34, s32, 8448
    s_lshr_b32 s59, s32, 1
    s_lshl_b32 s35, s32, 10
    s_lshl_b32 s50, s33, 3
    s_add_u32 s35, s35, s50
    s_lshl_b32 s50, s59, 6
    s_add_u32 s35, s35, s50
    s_lshl_b32 s50, s33, 6
    s_add_u32 s39, s34, s50
    s_mul_i32 s37, s59, 71680
    s_mul_i32 s36, s33, 28672
    s_add_u32 s36, s36, s37
    s_mul_i32 s50, s33, 7168
    s_add_u32 s37, s37, s50
    s_add_u32 s37, s37, 57344
    s_lshl_b32 s50, s32, 13
    v_lshl_add_u32 v12, v21, 4, s50
    v_lshrrev_b32 v22, 3, v21
    v_mul_u32_u24 v14, 896, v22
    v_lshrrev_b32 v22, 4, v21
    v_and_b32 v23, 7, v21
    v_xor_b32 v22, v22, v23
    v_lshl_add_u32 v14, v22, 4, v14
    """)
    a('s_mov_b32 s30, %d\ns_mul_i32 s3, s32, %d\ns_add_u32 s3, s3, %d' % (PREG + 32, EXW, EX))
    a('s_mov_b32 %s, 0x%x\ns_mov_b32 %s, 0x%x\ns_mov_b32 %s, 0x%x' % (sSCALE, SCALE, sLO, (127 - 30) << 23, sHI, (127 + 30) << 23))
    a("""
    s_mul_i32 s100, s60, 10
    s_mul_i32 s50, s59, 5
    s_add_u32 s100, s100, s50
    s_mul_i32 s100, s100, 28672
    s_mul_i32 s50, s63, 896
    s_add_u32 s100, s100, s50
    s_waitcnt lgkmcnt(0)
    s_mul_i32 s50, s60, 143360
    s_add_u32 s8, s8, s50
    s_addc_u32 s9, s9, 0
    s_lshl_b32 s50, s38, 10
    s_add_u32 s20, s20, s50
    s_addc_u32 s21, s21, 0
    s_sub_u32 s22, 3670016, s50
    s_lshl_b32 s58, s60, 3
    s_add_u32 s58, s58, s38
    KVOFF
    s_add_u32 s12, s12, s50
    s_addc_u32 s13, s13, 0
    s_add_u32 s16, s16, s50
    s_addc_u32 s17, s17, 0
    s_mul_i32 s50, s38, 458752
    s_add_u32 s24, s24, s50
    s_addc_u32 s25, s25, 0
    s_lshl_b32 s58, s63, 4
    s_add_u32 s58, s58, s60
    s_lshl_b32 s50, s58, 3
    s_add_u32 s96, s96, s50
    s_addc_u32 s97, s97, 0
    s_lshl_b32 s58, s58, 2
    s_add_u32 s58, s58, s32
    """)
    a('s_mul_i32 s50, s58, %d\ns_add_u32 s28, s28, s50\ns_addc_u32 s29, s29, 0' % PSTRIDE)
    a.label('L_start')
    a("""
    s_mov_b64 s[46:47], 0
    v_bfe_u32 v21, v12, 4, 6
    v_bfe_u32 v13, v21, 5, 1
    v_lshlrev_b32 v13, 4, v13
    v_bfe_u32 v23, v21, 4, 1
    v_lshl_add_u32 v13, v23, 2, v13
    v_bfe_u32 v23, v21, 3, 1
    v_add_u32 v13, v13, v23
    s_lshr_b32 s101, s32, 1
    s_lshl_b32 s101, s101, 3
    s_lshl_b32 s50, s33, 1
    s_add_u32 s101, s101, s50
    v_add_u32 v13, s101, v13
    v_lshlrev_b32 v13, 13, v13
    v_and_b32 v23, 7, v21
    v_lshl_add_u32 v13, v23, 4, v13
    """)
    t = a.text()
    et = ('s_getpc_b64 s[54:55]\n    s_bfe_u32 s3, s2, 0x30003\n    v_lshrrev_b32 v15, 4, v0\n    v_lshl_add_u32 v15, v15, 3, s3\n    v_lshlrev_b32 v15, 7, v15\n'
          '    global_load_dword a252, v15, s[54:55]') if o.early else ''
    t = t.replace('EARLY_TOUCH', et).replace('KVOFF', 's_mov_b32 s50, 0' if o.fakekv else 's_lshl_b32 s50, s58, 19')
    if o.rot: t = t.replace('L_start:', '    s_lshr_b32 s63, s2, 3\n    s_mul_i32 s63, s63, %d\n    s_lshl_b32 s63, s63, 15\nL_start:' % o.rot)
    if o.pstamp == 1:
        t = t.replace('    s_waitcnt lgkmcnt(0)\n    s_mul_i32 s50, s60, 143360', '    s_memtime s[66:67]\n    s_waitcnt lgkmcnt(0)\n    s_memtime s[68:69]\n    s_mul_i32 s50, s60, 143360')
        t += '    s_memtime s[70:71]\n'
    return t

def prologue2():
    return ["v_bfe_u32 v21, v12, 4, 6",
            "v_lshrrev_b32 v23, 2, v21", "v_mul_u32_u24 v4, 1056, v23", "v_and_b32 v22, 3, v21", "v_lshl_add_u32 v4, v22, 3, v4",
            "s_mul_i32 s101, s33, 16960", "s_mul_i32 s50, s33, 16832", "s_add_u32 s50, s50, 64", "v_add_u32 v5, s50, v4",
            "s_sub_u32 s50, 16960, s50", "v_add_u32 v6, s50, v4", "s_sub_u32 s50, 16960, s101", "v_add_u32 v7, s50, v4", "v_add_u32 v4, s101, v4",
            "v_bfe_u32 v23, v21, 3, 1", "v_mul_u32_u24 v8, 1032, v23", "v_bfe_u32 v23, v21, 4, 1", "v_mul_u32_u24 v23, 2112, v23", "v_add_u32 v8, v8, v23",
            "v_bfe_u32 v23, v21, 2, 1", "v_lshl_add_u32 v8, v23, 7, v8", "v_bfe_u32 v23, v21, 5, 1", "v_lshl_add_u32 v8, v23, 9, v8",
            "v_lshl_add_u32 v8, v22, 4, v8", "s_lshl_b32 s101, s33, 6", "s_sub_u32 s50, 64, s101", "v_add_u32 v9, s50, v8", "v_add_u32 v8, s101, v8",
            "v_lshl_add_u32 v16, v21, 4, s3", "s_xor_b32 s50, s32, 1", "s_mul_i32 s50, s50, %d" % EXW, "s_add_u32 s50, s50, %d" % EX,
            "v_lshl_add_u32 v17, v21, 4, s50"] + ["v_mov_b32 v%d, 0" % i for i in range(24, 36)]

def main(argv):
    ap = argparse.ArgumentParser()
    ap.add_argument('-o', default='k.s')
    ap.add_argument('--map', default='B')
    ap.add_argument('--stamps', type=int, default=0)
    ap.add_argument('--stiles', default='0:60:4')
    ap.add_argument('--lat_lds', type=float, default=8)
    ap.add_argument('--lat_vm', type=float, default=40)
    ap.add_argument('--late', type=float, default=1)
    ap.add_argument('--dma_span', type=float, default=66)
    ap.add_argument('--dma_lead', type=float, default=-8)
    ap.add_argument('--kvflag', default=' nt')
    ap.add_argument('--wflag', default='')
    ap.add_argument('--xflag', default='')
    ap.add_argument('--codetouch', type=int, default=3)
    ap.add_argument('--ct_lead', type=int, default=6144)
    ap.add_argument('--wtouch', type=int, default=6)
    ap.add_argument('--touch', default='')
    ap.add_argument('--touch1', default='')
    ap.add_argument('--tflag', default='')
    ap.add_argument('--pub_at', type=int, default=70)
    ap.add_argument('--pub_soft', type=int, default=50)
    ap.add_argument('--poll_at', type=int, default=-10)
    ap.add_argument('--poll_soft', type=int, default=50)
    ap.add_argument('-v', action='store_true')
    ap.add_argument('--prek', type=int, default=0)
    ap.add_argument('--inflight', type=int, default=0)
    ap.add_argument('--mix', type=int, default=8)
    ap.add_argument('--pace', default='')
    ap.add_argument('--tcls', type=int, default=0)
    ap.add_argument('--tdt', type=float, default=0.5)
    ap.add_argument('--nb1', type=int, default=46)
    ap.add_argument('--nb2', type=int, default=106)
    ap.add_argument('--mid0', type=int, default=8)
    ap.add_argument('--mid1', type=int, default=15)
    ap.add_argument('--opre', type=int, default=4)
    ap.add_argument('--t1', default='none')
    ap.add_argument('--t3', default='-3.05:0:2,2.1:4:2')
    ap.add_argument('--t2', default='none')
    ap.add_argument('--xfr', type=int, default=3)
    ap.add_argument('--vmsp', type=int, default=4)
    ap.add_argument('--show', default='')
    ap.add_argument('--ablate', default='')
    ap.add_argument('--arange', default='900:1500')
    ap.add_argument('--dbg_lo', type=int, default=0)
    ap.add_argument('--dbg_hi', type=int, default=6)
    ap.add_argument('--rep', type=int, default=1)
    ap.add_argument('--dbgstamp', type=int, default=0)
    ap.add_argument('--fakekv', type=int, default=0)
    ap.add_argument('--rot', type=int, default=0)
    ap.add_argument('--wt_lead', type=int, default=6)
    ap.add_argument('--wt0', type=int, default=2)
    ap.add_argument('--early', type=int, default=1)
    ap.add_argument('--pstamp', type=int, default=0)
    ap.add_argument('--stflag', default='sc1')
    o = ap.parse_args(argv)
    for k in ('kvflag', 'wflag', 'xflag', 'stflag', 'tflag'):
        v = getattr(o, k).strip().replace('+', ' ')
        setattr(o, k, (' ' + v) if v and v != 'none' else '')
    pt = lambda v: [(float(x.split(':')[0]), int(x.split(':')[1]), int((x.split(':') + ['0'])[2])) for x in v.split(',') if x and x != 'none']
    o.touch1 = pt(o.touch1 or o.touch); o.touch = pt(o.touch)
    o.stiles = list(range(*map(int, o.stiles.split(':'))))[:14]
    o.pace = [float(x) for x in o.pace.split(':')] if o.pace else None
    g = Gen(o)
    if o.pstamp == 1: g.nstamp = 4; o.stiles = o.stiles[:10]
    if o.pstamp == 2: o.stiles = o.stiles[:4]
    xa = g.x_addr
    def first_x():
        if o.pstamp == 1: g.salu('s_memtime s[72:73]', ['PRE', 'm0'], ['STAMP'])
        g.vops(prologue2()); g.x_addr = xa; xa()
    g.x_addr = first_x
    out = g.build()
    if o.ablate:
        kinds = o.ablate.split(','); lo, hi = map(int, o.arange.split(':')); mi = -1; o2 = []
        for t, k in out:
            if k == 'mfma': mi += 1
            if 'L_restart' in t: continue
            if k == 'ldsr' and 'half' in kinds and (640 <= mi < 1700 or 2480 <= mi < 3560 or ('halfw' in kinds and (200 <= mi < 500 or 1950 <= mi < 2350 or 3700 <= mi < 4700))):
                nh = getattr(o, '_nh', 0) + (2 if 'b128' in t else 1); o._nh = nh
                if ((nh - 1) // 2) % 2 == 0 or 'all' in kinds: continue
            if lo <= mi < hi:
                if k in kinds and 'v_add_u32' not in t and 'v_subrev' not in t and 'memtime' not in t: continue
                if k == 'bar' and 'bar' in kinds: t = t.replace('s_barrier', 's_nop 0')
                if k == 'wait' and 'lgw' in kinds and 'lgkmcnt' in t and 'vmcnt' not in t: continue
            o2.append((t, k))
        out = o2
    body = prologue(o)
    body += ''.join('    ' + t + '\n' for t, k in out)
    a = Asm()
    if o.stamps:
        w = 4 if o.stamps == 1 else 2
        k = STAMP0 + w + w * g.nstamp; ns = g.nstamp + 2
        a('s_waitcnt vmcnt(0)')
        a('s_memrealtime s[%d:%d]\ns_memtime s[%d:%d]' % (k, k + 1, k + 2, k + 3) if w == 4 else 's_memtime s[%d:%d]' % (k, k + 1))
        a('s_load_dwordx2 s[40:41], s[0:1], 96\ns_waitcnt lgkmcnt(0)\ns_cmp_lg_u32 s32, 0\ns_cbranch_scc1 L_end')
        a('s_mul_i32 s50, s2, %d\ns_add_u32 s50, s50, 280000000\nv_mov_b32 v8, s50' % (ns * 16))
        for s in range(ns):
            for j in range(4): a('v_mov_b32 v%d, s%d' % (4 + j, STAMP0 + w * s + (j % w)))
            a('global_store_dwordx4 v8, v[4:7], s[40:41] offset:%d\ns_nop 3' % (16 * s))
        if o.dbgstamp:
            a('s_cmp_lg_u32 s2, 0\ns_cbranch_scc1 L_end\ns_load_dwordx2 s[40:41], s[0:1], 88\ns_waitcnt lgkmcnt(0)\nv_mov_b32 v8, 0')
            for s in range(ns - 1):
                a('s_sub_u32 s50, s%d, s%d\nv_mov_b32 v4, s50\nglobal_store_dword v8, v4, s[40:41] offset:%d' % (STAMP0 + 4 * s + 4, STAMP0 + 4 * s, 4 * s))
                a('s_sub_u32 s50, s%d, s%d\nv_mov_b32 v5, s50\nglobal_store_dword v8, v5, s[40:41] offset:%d\ns_nop 3' % (STAMP0 + 4 * s + 6, STAMP0 + 4 * s + 2, 32 + 4 * s))
        if o.dbgstamp > 1:
            a('s_load_dwordx2 s[40:41], s[0:1], 96\ns_waitcnt lgkmcnt(0)\nv_mov_b32 v8, 279000000\nglobal_load_dword v9, v8, s[40:41] sc1\ns_waitcnt vmcnt(0)')
            a('v_readfirstlane_b32 s51, v9\nv_mov_b32 v9, 0x13572468\nglobal_store_dword v8, v9, s[40:41] sc1\ns_cmp_eq_u32 s51, 0x13572468\ns_cbranch_scc1 L_end')
            a('s_sub_u32 s50, s%d, s%d\ns_cmp_lt_u32 s50, %d\ns_cbranch_scc1 L_end' % (STAMP0 + 4 * o.dbg_hi, STAMP0 + 4 * o.dbg_lo, o.dbgstamp))
            for s in range(ns - 1):
                a('s_sub_u32 s50, s%d, s%d\nv_cvt_f32_u32 v%d, s50' % (STAMP0 + 4 * s + 4, STAMP0 + 4 * s, 10 + s))
            a('s_sub_u32 s50, s%d, s%d\nv_cvt_f32_u32 v16, s50' % (STAMP0 + 6, STAMP0 + 2))
            a('s_sub_u32 s50, s%d, s%d\nv_cvt_f32_u32 v17, s50' % (STAMP0 + 10, STAMP0 + 6))
            for s in range(4): a('v_cvt_pk_bf16_f32 v%d, v%d, v%d' % (20 + s, 10 + 2 * s, 11 + 2 * s))
            a('buffer_store_dwordx4 v[20:23], off, s[4:7], 0')
        print('stamps: use --stamps %d' % (2 * ns))
    a('L_end:\ns_endpgm')
    a('L_restart:\ns_waitcnt vmcnt(0) lgkmcnt(0)\ns_barrier\ns_mov_b32 %s, -1\ns_branch L_start' % sMODE)
    body += a.text() + g.spincode() + g.hook(0) + g.hook(1) + '    .fill 8192, 4, 0xBF800000\n'
    kl = [dict(name=NAME + '_kernel', grid=256, block=256, lds=LDS_BYTES, body=body, vgpr=512, sgpr=102, accum=256)] * o.rep
    if o.prek == 1: kl = [dict(name='nop_kernel', grid=1, block=64, lds=0, body='    s_endpgm\n', vgpr=8, sgpr=16, accum=8)] + kl
    if o.prek == 2:
        pb = prologue(o).replace('L_end', 'P_end').replace('L_start', 'P_start').replace('a252', 'v30')
        pb += ('    v_lshlrev_b32 v22, 5, v15\n    buffer_load_dword v30, v22, s[12:15], 0 offen nt\n    buffer_load_dword v30, v22, s[16:19], 0 offen nt\n'
               '    buffer_load_dword v30, v22, s[24:27], 0 offen nt\n    buffer_load_dword v30, v22, s[28:31], 0 offen nt\n    buffer_load_dword v30, v22, s[8:11], 0 offen nt\n'
               '    v_lshlrev_b32 v22, 7, v15\n    buffer_load_dword v30, v22, s[20:23], 0 offen nt\n    buffer_load_dword v30, v22, s[4:7], 0 offen nt\n'
               '    s_waitcnt vmcnt(0)\nP_end:\n    s_endpgm\n')
        kl = [dict(name='pre_kernel', grid=256, block=256, lds=LDS_BYTES, body=pb, vgpr=64, sgpr=102, accum=64)] + kl
    txt = build(kl)
    open(o.o, 'w').write(txt)
    tot, costs = estimate(out)
    nm = g.p.nm
    print('mfma %d  est cycles %d (ideal %d)  forced ops %d  instrs %d  bytes %d' % (nm, tot, nm * 16, g.p.stats['forced'], len(out), len(txt)))
    bounds = [0, 560, 1840, 2400, 3680, 4800]
    print('phase overhead:', [sum(c - 16 for i, c in costs if lo <= i < hi) for lo, hi in zip(bounds, bounds[1:])])
    if o.show:
        lo, hi = map(int, o.show.split(':')); mi = -1; row = []
        ab = {'mfma': ' M', 'ldsr': 'T', 'trans': 'E', 'valu': 'a', 'dma': 'D', 'vld': 'L', 'vst': 'S', 'wait': 'w', 'salu': 's', 'bar': '|BAR|', 'ldsw': 'W', 'nop': 'n', 'br': '^'}
        cd = dict(costs)
        for t, k in out:
            if k == 'mfma':
                if lo <= mi < hi and cd.get(mi, 16) > 16: row.append('(%d)' % cd[mi])
                mi += 1
            if lo <= mi < hi: row.append(ab[k])
        print(''.join(row))
    if o.v:
        print('forced:', g.p.stats['forced_gaps'])
        print('over:', [(i, c) for i, c in costs if c > 16])

if __name__ == '__main__':
    main(sys.argv[1:])
```
